```python
import torch

def _softmax(x, axis=-1):
    return torch.softmax(x, dim=axis)
def _gelu(x):
    return torch.nn.functional.gelu(x, approximate="tanh")
def _silu(x):
    return torch.nn.functional.silu(x)
def _sigmoid(x):
    return torch.sigmoid(x)
def _layernorm(x, axis=-1, eps=1e-5):
    m = x.mean(dim=axis, keepdim=True)
    v = x.var(dim=axis, keepdim=True, unbiased=False)
    return (x - m) / torch.sqrt(v + eps)
def _scatter_add(tgt, idx, src, axis=0):
    return tgt.clone().index_add_(axis, idx, src)
def _segment_sum(src, seg, n):
    out = torch.zeros((n,) + src.shape[1:], dtype=src.dtype)
    return out.index_add_(0, seg, src)
def _pad(x, pw):
    flat = tuple(v for pair in reversed(pw) for v in pair)
    return torch.nn.functional.pad(x, flat)

kernel_name = 'recurrent_scan__ssm_conv_s4d__moe_arch_mod__prompt'

def setup_inputs():

    _w = (lambda a: (lambda t: t.to(torch.bfloat16) if t.is_floating_point() else t)(torch.as_tensor(a)))
    def _A_setup():
        Bsz, L, D, N = 1, 2048, 1024, 128
        return {
            "u": _w((lambda *s: torch.randn(*s, dtype=torch.bfloat16) * 0.05)(Bsz, L, D)),
            "log_A_real": _w((lambda *s: torch.randn(*s, dtype=torch.bfloat16) * 6.4)(D, N) * 0.5),
            "A_imag": _w((lambda *s: torch.randn(*s, dtype=torch.bfloat16) * 0.05)(D, N) * 3.14),
            "C_real": _w((lambda *s: torch.randn(*s, dtype=torch.bfloat16) * 0.05)(D, N) / N ** 0.5),
            "C_imag": _w((lambda *s: torch.randn(*s, dtype=torch.bfloat16) * 0.05)(D, N) / N ** 0.5),
            "log_dt": _w((lambda *s: torch.randn(*s, dtype=torch.bfloat16) * 0.05)(D) * 0.5 - 4.0),
            "D_skip": _w((lambda *s: torch.randn(*s, dtype=torch.bfloat16) * 0.05)(D)),
        }
    _A_in = _A_setup()

    def _B_setup():
        B, S, D, F, C = 1, 2048, 1024, 3584, 2
        return {
            "x": _w((lambda *s: torch.randn(*s, dtype=torch.bfloat16) * 0.05)(B, S, D)),
            "w_r": _w((lambda *s: torch.randn(*s, dtype=torch.bfloat16) * 0.05)(D)),
            "w_gate": _w((lambda *s: torch.randn(*s, dtype=torch.bfloat16) * 0.05)(D, F)),
            "w_up": _w((lambda *s: torch.randn(*s, dtype=torch.bfloat16) * 0.05)(D, F)),
            "w_down": _w((lambda *s: torch.randn(*s, dtype=torch.bfloat16) * 0.05)(F, D)),
        }
    _B_in = _B_setup()

    return {
        "A_u": _A_in["u"],
        "A_log_A_real": _A_in["log_A_real"],
        "A_A_imag": _A_in["A_imag"],
        "A_C_real": _A_in["C_real"],
        "A_C_imag": _A_in["C_imag"],
        "A_log_dt": _A_in["log_dt"],
        "A_D_skip": _A_in["D_skip"],
        "B_x": _B_in["x"],
        "B_w_r": _B_in["w_r"],
        "B_w_gate": _B_in["w_gate"],
        "B_w_up": _B_in["w_up"],
        "B_w_down": _B_in["w_down"],
    }

def reference(A_u, A_log_A_real, A_A_imag, A_C_real, A_C_imag, A_log_dt, A_D_skip, B_x, B_w_r, B_w_gate, B_w_up, B_w_down):
    def _A_ref(u, log_A_real, A_imag, C_real, C_imag, log_dt, D_skip):
        L = u.shape[1]
        dt = torch.exp(log_dt)
        A = -torch.exp(log_A_real) + 1j * A_imag
        C = (C_real + 1j * C_imag) * dt[:, None]
        pos = (lambda x, dt: x.to(dt))(torch.arange(L), log_dt.dtype)
        P = torch.exp((A * dt[:, None])[:, :, None] * pos[None, None, :])
        K = 2.0 * torch.einsum("dn,dnl->dl", C, P).real
        L2 = 2 * L
        u_t = (lambda x, *d: x.permute(*d))(u, 0, 2, 1)
        Kf = (lambda x, *a, **k: torch.fft.rfft(x.float(), *a, **k))(K, L2)
        Uf = (lambda x, *a, **k: torch.fft.rfft(x.float(), *a, **k))(u_t, L2)
        y = (lambda x, *a, **k: torch.fft.irfft(x, *a, **k).to(torch.bfloat16))(Uf * Kf[None, :, :], L2)[:, :, :L]
        y = (lambda x, *d: x.permute(*d))(y, 0, 2, 1)
        return y + u * D_skip[None, None, :]

    def _B_ref(x, w_r, w_gate, w_up, w_down):
        B, S, D = x.shape
        C = 2
        r = x @ w_r
        idx = torch.argsort(-r, axis=-1)[:, :C]
        idx_e = (lambda x, n, axis: torch.repeat_interleave(x, n, dim=axis))(idx.reshape(B, C, 1), D, axis=2)
        x_sel = (lambda x, i, axis: torch.take_along_dim(x, i, dim=axis))(x, idx_e, axis=1)
        g = _silu(x_sel @ w_gate)
        u = x_sel @ w_up
        y = (g * u) @ w_down
        r_sel = _sigmoid((lambda x, i, axis: torch.take_along_dim(x, i, dim=axis))(r, idx, axis=1))
        y = y * r_sel.reshape(B, C, 1)
        b_off = (torch.arange(B) * S).reshape(B, 1)
        flat_idx = (idx + b_off).reshape(B * C)
        zero = (x * 0.0).reshape(B * S, D)
        upd = _scatter_add(zero, flat_idx, y.reshape(B * C, D), axis=0)
        return x + upd.reshape(B, S, D)

    x = A_u
    xn = _layernorm(x, axis=-1)
    s = _A_ref(xn, A_log_A_real, A_A_imag, A_C_real, A_C_imag, A_log_dt, A_D_skip)
    g = _silu(_B_ref(xn, B_w_r, B_w_gate, B_w_up, B_w_down))
    return x + s * g
```

```python
import re

TRANS = ('v_exp_f32', 'v_log_f32', 'v_rcp_f32', 'v_rsq_f32', 'v_sqrt_f32', 'v_sin_f32', 'v_cos_f32',
         'v_rcp_iflag_f32', 'v_exp_f16', 'v_rcp_f16')


def v(n, cnt=1):
    return f'v{n}' if cnt == 1 else f'v[{n}:{n + cnt - 1}]'


def s(n, cnt=1):
    return f's{n}' if cnt == 1 else f's[{n}:{n + cnt - 1}]'


def a(n, cnt=1):
    return f'a{n}' if cnt == 1 else f'a[{n}:{n + cnt - 1}]'


_REG = re.compile(r'^-?(?:abs\()?\|?([vsa])(?:(\d+)|\[(\d+):(\d+)\])\|?\)?$')


def regs_of(tok):
    tok = str(tok).strip()
    if tok in ('vcc', 'exec', 'm0', 'scc'):
        return {tok}
    if tok in ('vcc_lo', 'vcc_hi'):
        return {'vcc'}
    if tok in ('exec_lo', 'exec_hi'):
        return {'exec'}
    m = _REG.match(tok)
    if not m:
        return set()
    k = m.group(1)
    if m.group(2) is not None:
        return {(k, int(m.group(2)))}
    return {(k, i) for i in range(int(m.group(3)), int(m.group(4)) + 1)}


class Inst:
    def __init__(self, op, ops, mod='', guard=None, comment=''):
        self.op, self.ops, self.mod, self.guard, self.comment = op, [str(o) for o in ops], mod, guard, comment
        self.classify()

    def text(self):
        t = self.op
        if self.ops:
            t += ' ' + ', '.join(self.ops)
        if self.mod:
            t += ' ' + self.mod
        if self.comment:
            t = f'{t:<70s} ; {self.comment}'
        return '    ' + t

    def classify(self):
        op, ops = self.op, self.ops
        R = [regs_of(o) for o in ops]
        self.kind, self.wr, self.rd = 'other', set(), set()
        self.passes = 0
        self.srcc = set()
        self.dot_ab = (R[1] | R[2]) if op.startswith('v_dot') else set()
        self.is_dpp = bool(re.search(r'(row_|quad_perm|wave_)', self.mod)) or op.endswith('_dpp')
        base = re.sub(r'_(e32|e64|dpp|sdwa)$', '', op)
        self.base = base
        U = lambda lst: set().union(*lst) if lst else set()
        if op.startswith('v_mfma'):
            self.kind = 'mfma'
            self.wr, self.rd = R[0], U(R[1:4])
            self.srca_b = U(R[1:3])
            self.srcc = R[3]
            self.passes = 8 if '32x32' in op else 4
        elif op.startswith('v_'):
            self.kind = 'valu'
            if base.startswith('v_cmp'):
                self.wr, self.rd = R[0], U(R[1:])
            elif base in ('v_readlane_b32', 'v_readfirstlane_b32'):
                self.wr, self.rd = R[0], U(R[1:])
            elif base in ('v_permlane16_swap_b32', 'v_permlane32_swap_b32', 'v_swap_b32'):
                self.wr, self.rd = R[0] | R[1], R[0] | R[1]
            elif base in ('v_add_co_u32', 'v_sub_co_u32', 'v_addc_co_u32', 'v_subb_co_u32'):
                self.wr, self.rd = R[0] | R[1], U(R[2:])
            else:
                self.wr, self.rd = R[0], U(R[1:])
                if base in ('v_fmac_f32', 'v_dot2c_f32_bf16', 'v_writelane_b32', 'v_dot2c_f32_f16', 'v_pk_fmac_f16',
                            'v_fmac_f16') or self.is_dpp or 'UNUSED_PRESERVE' in self.mod or \
                        base in ('v_cvt_f16_f32',) and 'op_sel' in self.mod:
                    self.rd |= R[0]
                if base == 'v_cndmask_b32' and len(ops) == 3:
                    self.rd |= {'vcc'}
            self.rd |= {'exec'}
        elif op.startswith('ds_'):
            self.kind = 'ds'
            if re.match(r'ds_(read|bpermute|permute|swizzle)', op) or '_rtn_' in op:
                self.wr, self.rd = R[0], U(R[1:])
            else:
                self.rd = U(R)
        elif op.startswith(('global_', 'buffer_')):
            self.kind = 'vmem'
            lds = op.startswith('global_load_lds') or re.search(r'\blds\b', self.mod)
            if lds:
                self.rd = U(R) | {'m0'}
            elif '_load' in op:
                self.wr, self.rd = R[0], U(R[1:])
            elif '_atomic' in op and 'sc0' in self.mod:
                self.wr, self.rd = R[0], U(R[1:])
            else:
                self.rd = U(R)
            self.wide_store = ('_store' in op) and (op.endswith('x4') or op.endswith('x3'))
            self.store_data = set()
            if self.wide_store:
                self.store_data = R[1] if op.startswith('global_') else R[0]
        elif op.startswith('s_load') or op.startswith('s_memtime') or op.startswith('s_memrealtime'):
            self.kind = 'smem'
            self.wr, self.rd = R[0], U(R[1:])
        elif op in ('s_waitcnt', 's_nop', 's_barrier', 's_endpgm', 's_sleep', 's_setprio', 's_branch') or \
                op.startswith('s_cbranch'):
            self.kind = 'ctl'
            if op in ('s_cbranch_vccz', 's_cbranch_vccnz'):
                self.rd = {'vcc'}
            if op in ('s_cbranch_execz', 's_cbranch_execnz'):
                self.rd = {'exec'}
            if op in ('s_cbranch_scc0', 's_cbranch_scc1'):
                self.rd = {'scc'}
        elif op.startswith('s_'):
            self.kind = 'salu'
            if op.startswith('s_cmp') or op.startswith('s_bitcmp'):
                self.wr, self.rd = {'scc'}, U(R)
            elif op.startswith('s_setreg'):
                self.rd = U(R)
            else:
                self.wr, self.rd = set(R[0]), U(R[1:])
                if 'saveexec' in op:
                    self.wr |= {'exec', 'scc'}
                    self.rd |= {'exec'}
                if op in ('s_addk_i32', 's_mulk_i32'):
                    self.rd |= R[0]
                if op.startswith(('s_cselect', 's_addc', 's_subb', 's_cmov')):
                    self.rd |= {'scc'}
                if not op.startswith(('s_mov', 's_cselect', 's_mul', 's_getreg', 's_getpc', 's_movk', 's_bfm',
                                      's_sext', 's_brev')):
                    self.wr |= {'scc'}
        else:
            raise ValueError('unknown op ' + op)

    def states(self):
        if self.op == 's_nop':
            return int(self.ops[0], 0) + 1
        return 1


class Label:
    def __init__(self, name, guard=None):
        self.name, self.guard = name, guard

    def text(self):
        return f'{self.name}:'


class Raw:
    def __init__(self, t, guard=None):
        self.t, self.guard = t, guard

    def text(self):
        return self.t


def vregs(S):
    return {r for r in S if isinstance(r, tuple) and r[0] in ('v', 'a')}


def sregs(S):
    return {r for r in S if (isinstance(r, tuple) and r[0] == 's') or r == 'vcc'}


def need_states(p, c):
    n = 0
    if p.kind == 'valu':
        pw_v, pw_s = vregs(p.wr), sregs(p.wr)
        if c.kind == 'valu':
            if c.is_dpp and pw_v & c.rd:
                n = max(n, 2)
            if c.base.startswith('v_permlane') and pw_v & c.rd:
                n = max(n, 2)
            if c.base in ('v_readlane_b32', 'v_readfirstlane_b32') and pw_v & c.rd:
                n = max(n, 1)
            if pw_s & c.rd:
                n = max(n, 2)
                if c.base in ('v_readlane_b32', 'v_writelane_b32'):
                    n = max(n, 4)
            if p.base in TRANS and pw_v & c.rd:
                n = max(n, 1)
            if re.search(r'dst_sel:(WORD|BYTE)', p.mod) and pw_v & (c.rd | c.wr):
                n = max(n, 1)
            if p.base.startswith('v_cvt') and 'op_sel' in p.mod and pw_v & (c.rd | c.wr):
                n = max(n, 1)
        if p.base.startswith('v_dot') and pw_v & (c.rd | c.wr):
            same_chain = c.kind == 'valu' and c.base == p.base and not (pw_v & c.dot_ab)
            if not same_chain:
                n = max(n, 3)
        if c.kind == 'mfma' and pw_v & c.rd:
            n = max(n, 2)
        if c.kind == 'vmem' and pw_s & c.rd:
            n = max(n, 5)
        if c.kind in ('vmem', 'ds') and p.base in TRANS and pw_v & c.rd:
            n = max(n, 1)
    if p.kind == 'mfma':
        big = p.passes == 8
        if c.kind == 'mfma':
            if p.wr & c.srca_b:
                n = max(n, 12 if big else 8)
            if p.wr & c.srcc:
                if not (p.wr == c.srcc and p.passes == c.passes):
                    n = max(n, 10 if big else 6)
            if p.wr & c.wr and not (p.wr & c.srcc):
                n = max(n, 10 if big else 6)
        elif c.kind in ('valu', 'vmem', 'ds'):
            if p.wr & (c.rd | c.wr):
                n = max(n, 12 if big else 8)
            if c.kind == 'valu' and p.srcc & vregs(c.wr):
                n = max(n, 7 if big else 3)
    if p.kind == 'vmem' and getattr(p, 'wide_store', False):
        if p.store_data & c.wr:
            n = max(n, 2 if c.kind in ('valu', 'mfma') else 1)
    if p.kind == 'salu' and 'm0' in p.wr and 'm0' in c.rd:
        n = max(n, 1)
    return n


class Gen:
    def __init__(self):
        self.items = []
        self.guard = None
        self.uid = 0

    def __getattr__(self, name):
        if name.startswith(('v_', 's_', 'ds_', 'global_', 'buffer_')):
            def f(*ops, mod='', c=''):
                i = Inst(name, ops, mod, self.guard, c)
                self.items.append(i)
                return i
            return f
        raise AttributeError(name)

    def label(self, name):
        self.items.append(Label(name, self.guard))

    def newlabel(self, stem):
        self.uid += 1
        return f'L_{stem}_{self.uid}'

    def raw(self, t):
        self.items.append(Raw(t, self.guard))

    def comment(self, t):
        self.items.append(Raw('    ; ' + t, self.guard))

    def waitcnt(self, vm=None, lgkm=None):
        parts = []
        if vm is not None:
            parts.append(f'vmcnt({vm})')
        if lgkm is not None:
            parts.append(f'lgkmcnt({lgkm})')
        self.s_waitcnt(' '.join(parts))

    class _G:
        def __init__(self, g, name):
            self.g, self.name = g, name

        def __enter__(self):
            self.old = self.g.guard
            self.g.guard = self.name if self.old is None else self.old + '&' + self.name

        def __exit__(self, *a):
            self.g.guard = self.old

    def guarded(self, name):
        return Gen._G(self, name)

    def insert_pads(self, window=24):
        out, hist = [], []
        npad = 0
        for it in self.items:
            if isinstance(it, Inst):
                need = 0
                for p, d in hist:
                    k = need_states(p, it) - d
                    need = max(need, k)
                while need > 0:
                    k = min(need, 16)
                    nop = Inst('s_nop', [str(k - 1)], guard=it.guard)
                    out.append(nop)
                    hist = [(p, d + k) for p, d in hist]
                    need -= k
                    npad += 1
                st = it.states()
                hist = [(p, d + st) for p, d in hist if d + st < window]
                hist.append((it, 0))
                if it.op in ('s_branch', 's_endpgm'):
                    hist = []
            out.append(it)
        self.items = out
        return npad

    def check_branch_edges(self, window=24):
        labels = {it.name: i for i, it in enumerate(self.items) if isinstance(it, Label)}
        probs = []
        for i, it in enumerate(self.items):
            if isinstance(it, Inst) and (it.op == 's_branch' or it.op.startswith('s_cbranch')):
                tgt = labels.get(it.ops[0])
                if tgt is None:
                    probs.append(f'missing label {it.ops[0]}')
                    continue
                before, d = [], 1
                for j in range(i - 1, -1, -1):
                    x = self.items[j]
                    if isinstance(x, Inst):
                        if x.op in ('s_branch', 's_endpgm'):
                            break
                        before.append((x, d))
                        d += x.states()
                        if d > window:
                            break
                e = 0
                for j in range(tgt + 1, len(self.items)):
                    y = self.items[j]
                    if isinstance(y, Inst):
                        for p, dd in before:
                            if need_states(p, y) > dd - 1 + e:
                                probs.append(f'edge {it.ops[0]}: "{p.text().strip()}" -> "{y.text().strip()}"')
                        e += y.states()
                        if e > window or y.op in ('s_branch', 's_endpgm'):
                            break
        return probs

    def check_waits(self, scenario):
        def on(g):
            if g is None:
                return True
            return all(scenario.get(x.lstrip('!'), False) != x.startswith('!') for x in g.split('&'))
        vm, lg, probs = [], [], []
        for it in self.items:
            if not isinstance(it, Inst) or not on(it.guard):
                continue
            if it.op == 's_waitcnt':
                t = ' '.join(it.ops) + ' ' + it.mod
                m = re.search(r'vmcnt\((\d+)\)', t)
                if m:
                    n = int(m.group(1))
                    while len(vm) > n:
                        vm.pop(0)
                m = re.search(r'lgkmcnt\((\d+)\)', t)
                if m:
                    n = int(m.group(1))
                    if any(k == 'smem' for k, _ in lg):
                        if n == 0:
                            lg = []
                    else:
                        while len(lg) > n:
                            lg.pop(0)
                continue
            touched = it.rd | it.wr
            for q, name in ((vm, 'vmcnt'), (lg, 'lgkmcnt')):
                for e in q:
                    dst = e[1]
                    if dst & touched:
                        if it.kind == e[0] and it.kind in ('vmem', 'ds') and not (dst & it.rd):
                            continue
                        probs.append(f'{name}: "{it.text().strip()}" touches {sorted(map(str, dst & touched))[:3]} in flight')
            if it.kind == 'vmem':
                vm.append(('vmem', set(it.wr)))
                if len(vm) > 63:
                    probs.append('vmcnt overflow at ' + it.text().strip())
            elif it.kind == 'ds':
                lg.append(('ds', set(it.wr)))
            elif it.kind == 'smem':
                lg.append(('smem', set(it.wr)))
                if len(it.wr) > 1:
                    lg.append(('smem', set()))
        return probs

    def max_regs(self):
        mv = ms = ma = -1
        for it in self.items:
            if isinstance(it, Inst):
                for r in it.rd | it.wr:
                    if isinstance(r, tuple):
                        if r[0] == 'v':
                            mv = max(mv, r[1])
                        elif r[0] == 's':
                            ms = max(ms, r[1])
                        else:
                            ma = max(ma, r[1])
        return mv + 1, ms + 1, ma + 1

    def text(self):
        return '\n'.join(it.text() for it in self.items) + '\n'
```

```python
import struct
import sys
from asmgen import Gen, Inst, v, s

NAME = 'recurrent_scan__ssm_conv_s4d__moe_arch_mod__prompt'
OPT = dict(ts=False, only=None, prio=False, outmod='', hdrj='18', pf=1, ab='', head='4', e3blk='mid', halead='9', bal='k+a', guard=1, late='5', pollj='20', plan='1', w2=0, strip=0, x1late=1, x0early=0, kearly=0, wnt='', xnt='', knt='', pnt='sc1', stripmod='')
for a_ in sys.argv[2:]:
    if '=' in a_:
        k_, v_ = a_.split('=', 1)
        OPT[k_] = int(v_) if k_ in ('pf', 'guard', 'w2', 'strip', 'x1late', 'kearly', 'x0early') else v_
    else:
        OPT[a_] = True

WS_EPOCH, WS_HDR = 0, 0x1000
WS_HA, WS_HB, WS_PAY = 0x10000, 0x80000, 0x200000
WS_TS = 0x700000
L_KEYS, L_WTOP, L_SROW = 0, 64, 128
TILE_RS = 2112
L_KG, KG_SZ, TAB_RS, ATAB = 1024, 15424, 272, 8704
KCP = 2112
L_XN, CS, PADB = L_KG, KG_SZ, 576
L_UP = L_KG + 8448
L_YB, CSR = L_UP, KG_SZ
GRS, GMAT = 144, 256 * 144
WDRS = 544
L_GATE = L_KG + 8 * KG_SZ
L_TILE = L_GATE
L_WST = L_GATE
L_XS, L_HS = L_GATE + GMAT, 256
LDS_BYTES = L_XS + 1024
E_RD, E_T5O, E_T3E, E_T5E, E_T3O, E_T7, E_T9 = 0, 560, 624, 688, 752, 816, 896
sW = 2
pX, pLA, pAI, pCR, pCI, pLD, pDK = 4, 6, 8, 10, 12, 14, 16
pTAB = 18
pWR, pWG, pWU, pWD, pOUT, pDBG, pWS = 20, 22, 24, 26, 28, 30, 32
sC, sCG, sSET, sCB, sKQ, sTAG, sEP, sD = 34, 35, 36, 37, 38, 39, 40, 41
sT0, sT1, sT2, sT3, sT4, sT5 = 42, 43, 44, 45, 46, 47
pA, pB = 48, 50
sLD, sMOE = 52, 53
sI0, sI1 = 54, 55
sDK = 56
sK0, sK1, sINV, sNTAG, sCNT, sADD, sK1024, sRED = 60, 61, 62, 63, 64, 65, 66, 67
sDF = 68
sONES, sNL2E, sKGB, sHI = 76, 77, 78, 79
sKAB = 19
pPW0, pPW1 = 6, 8
pPR0, pPR1 = 10, 12
pHW, pHR = 14, 16
pG, pU = 22, 24
pWDB = 26
pOB = 28
pXR0, pXR1 = 80, 82
pHAW, pHAR, pHBW = 84, 86, 88
pXS = 96
sTS = 90
vTID, vLANE, vO16 = 0, 1, 2
GU, WD, KF, BAND, TMP = 16, 48, 80, 192, 208
KD = lambda sp: KF + 4 * sp
KX = KF + 68
KS2 = lambda d, p: KF + 72 + 8 * (d - 2) + 4 * p
KS3 = lambda d: KF + 96 + 4 * (d - 4)
B5, B3, B7, B9 = BAND, BAND + 4, BAND + 8, BAND + 12
XRAW = 248
aXNW, aGST, aE2W, aE2A, aF, aF2, aF3, aYB, aEY0, aEY1, aEX0, aEX1, aOUT = 3, 4, 5, 6, 7, 8, 9, 10, 11, 12, 13, 14, 15

LOG2E = 1.4426950408889634


def f2u(x):
    return struct.unpack('<I', struct.pack('<f', x))[0]


def hx(x):
    return f'0x{x & 0xffffffff:x}'


LOG2E_HI = f2u(LOG2E)
LOG2E_LO = f2u(LOG2E - struct.unpack('<f', struct.pack('<I', LOG2E_HI))[0])

g = Gen()
MAXSPIN = 200000
DPP = 'row_mask:0xf bank_mask:0xf'
NSTAMP = [0]
STAMP_NAMES = []


def addr(dst, base, off):
    g.s_add_u32(s(dst), s(base), off)
    g.s_addc_u32(s(dst + 1), s(base + 1), 0)


def set_exec(lo, hi):
    g.s_mov_b32('exec_lo', lo)
    g.s_mov_b32('exec_hi', hi)


def stamp(name):
    if not OPT['ts']:
        return
    if OPT['only'] and name not in OPT['only'].split(','):
        return
    if name in STAMP_NAMES:
        k = STAMP_NAMES.index(name)
    else:
        k = NSTAMP[0]
        NSTAMP[0] += 1
        STAMP_NAMES.append(name)
    g.s_waitcnt('lgkmcnt(0)')
    g.s_memrealtime(s(sTS, 2))
    g.s_waitcnt('lgkmcnt(0)')
    g.v_writelane_b32(v(vTID), s(sTS), 40 + k)


def fill(fillers, n=1):
    for _ in range(n):
        if fillers:
            fillers.pop(0)()


def reduce_op(op, r, fillers=None):
    fillers = fillers if fillers is not None else []
    steps = [f'row_shr:{k} {DPP}' for k in (1, 2, 4, 8)] + \
            ['row_bcast:15 row_mask:0xa bank_mask:0xf', 'row_bcast:31 row_mask:0xc bank_mask:0xf']
    for m in steps:
        fill(fillers, 2)
        getattr(g, op)(v(r), v(r), v(r), mod=m)
    fill(fillers, 1)


def unpack_bf16(lo, hi, src):
    g.v_lshlrev_b32(v(lo), 16, v(src))
    g.v_and_b32(v(hi), '0xffff0000', v(src))


def round_bf16(dst, src):
    g.v_cvt_pk_bf16_f32(v(dst), v(src), v(src))
    g.v_and_b32(v(dst), '0xffff0000', v(dst))


def exp_nat(dst, src, t0, t1):
    g.v_mul_f32(v(t0), hx(LOG2E_HI), v(src))
    g.v_mov_b32(v(t1), hx(LOG2E_HI))
    g.v_fma_f32(v(t1), v(src), v(t1), f'-{v(t0)}')
    g.v_fmac_f32(v(t1), hx(LOG2E_LO), v(src))
    g.v_exp_f32(v(t0), v(t0))
    g.v_mul_f32(v(t1), hx(f2u(0.6931471805599453)), v(t1))
    g.v_fma_f32(v(dst), v(t0), v(t1), v(t0))


def top2_merge(a1, a2, b1, b2, t):
    g.v_min_u32(v(t), v(a1), v(b1))
    g.v_max_u32(v(a1), v(a1), v(b1))
    g.v_max3_u32(v(a2), v(t), v(a2), v(b2))


def poll_fail(lab, code):
    g.s_add_u32(s(sCNT), s(sCNT), 1)
    g.s_sleep(1)
    g.s_cmp_lt_u32(s(sCNT), MAXSPIN)
    g.s_cbranch_scc1(lab)
    with g.guarded('timeout'):
        g.v_mov_b32(v(TMP), code)
        g.v_mov_b32(v(TMP + 1), 0)
        g.global_store_dword(v(TMP + 1), v(TMP), s(pDBG, 2))
        g.s_branch('L_end')


class DSQ:
    def __init__(self):
        self.issued = 0
        self.done = 0

    def op(self, name, *a, **k):
        getattr(g, name)(*a, **k)
        self.issued += 1
        return self.issued

    def need(self, tok):
        if tok > self.done:
            g.waitcnt(lgkm=min(self.issued - tok, 15))
            self.done = tok if self.issued - tok <= 15 else self.issued - 15


def skip_unless_moe(stem):
    lab = g.newlabel(stem)
    g.s_cmp_eq_u32(s(sMOE), 0)
    g.s_cbranch_scc1(lab)
    return lab


g.s_cmp_ge_u32(s(sW), 256)
g.s_cbranch_scc1('L_end')
g.s_setprio(3)
if OPT['ts']:
    g.s_memrealtime(s(94, 2))
g.s_load_dwordx16(s(4, 16), s(0, 2), 0)
g.s_load_dwordx8(s(20, 8), s(0, 2), 64)
g.s_load_dwordx4(s(28, 4), s(0, 2), 96)
g.s_load_dwordx2(s(32, 2), s(0, 2), 112)
g.v_lshrrev_b32(v(3), 6, v(vTID))
g.v_and_b32(v(vLANE), 63, v(vTID))
g.v_readfirstlane_b32(s(sC), v(3))
g.s_and_b32(s(sT0), s(sW), 7)
g.s_lshr_b32(s(sT1), s(sW), 3)
g.s_and_b32(s(sT2), s(sT1), 15)
g.s_lshl_b32(s(sT0), s(sT0), 4)
g.s_add_u32(s(sCG), s(sT0), s(sT2))
g.s_lshr_b32(s(sSET), s(sT1), 4)
g.v_lshlrev_b32(v(vO16), 4, v(vLANE))
g.s_lshl_b32(s(sD), s(sCG), 3)
g.s_add_u32(s(sD), s(sD), s(sC))
g.s_lshl_b32(s(sT0), s(sW), 3)
g.s_add_u32(s(sT0), s(sT0), s(sC))
g.s_lshl_b32(s(sT0), s(sT0), 11)
g.v_lshlrev_b32(v(3), 2, v(vLANE))
g.s_lshl_b32(s(sT1), s(sD), 8)
g.waitcnt(lgkm=0)

XA, WRR, KP, MX = 80, 88, TMP, TMP + 4
addr(pA, pX, s(sT0))
g.global_load_dwordx4(v(XA, 4), v(vO16), s(pA, 2), mod='nt')
g.global_load_dwordx4(v(XA + 4, 4), v(vO16), s(pA, 2), mod='offset:1024 nt')
g.s_setprio(0)
g.s_getpc_b64(s(pTAB, 2))
g.label('L_pc')
g.s_lshr_b32(s(sT0), s(sW), 3)
g.s_and_b32(s(sT0), s(sT0), 3)
g.s_lshl_b32(s(sT0), s(sT0), 13)
g.s_lshl_b32(s(sT1), s(sC), 10)
g.s_add_u32(s(sT0), s(sT0), s(sT1))
g.s_min_u32(s(sT0), s(sT0), 'L_tabend-L_pc-1024')
addr(pA, pTAB, s(sT0))
if OPT['pf']:
    g.global_load_dwordx4(v(BAND, 4), v(vO16), s(pA, 2))
g.s_add_u32(s(pTAB), s(pTAB), 'L_tab-L_pc')
g.s_addc_u32(s(pTAB + 1), s(pTAB + 1), 0)
g.s_lshl_b32(s(sT0), s(sD), 1)
g.s_and_b32(s(sT0), s(sT0), '0xfffffffc')
addr(pA, pLD, s(sT0))
g.s_load_dword(s(sLD), s(pA, 2), 0)
g.s_lshl_b32(s(sT0), s(sCG), 4)
addr(pA, pDK, s(sT0))
g.s_load_dwordx4(s(sDK, 4), s(pA, 2), 0)
g.s_load_dword(s(sEP), s(pWS, 2), WS_EPOCH)

LATE = int(OPT['late'])
g.s_and_b32(s(sT0), s(sW), 7)
g.s_cmp_lg_u32(s(sT0), LATE)
g.s_cselect_b32(s(sMOE), 1, 0)
g.s_cmp_gt_u32(s(sT0), LATE)
g.s_cselect_b32(s(sT1), 1, 0)
g.s_sub_u32(s(sT0), s(sT0), s(sT1))
g.s_min_u32(s(sT0), s(sT0), 6)
g.s_lshr_b32(s(sKQ), s(sW), 6)
g.s_bfe_u32(s(sCB), s(sW), '0x30003')
g.s_mul_i32(s(sCB), s(sCB), 7)
g.s_add_u32(s(sCB), s(sCB), s(sT0))
g.s_lshr_b32(s(sHI), s(sC), 2)
g.s_mov_b32(s(sONES), '0x3f803f80')
g.s_mov_b32(s(sNL2E), hx(f2u(-LOG2E)))
g.s_mul_i32(s(sKGB), s(sC), KG_SZ)
g.s_add_u32(s(sKGB), s(sKGB), L_KG)
g.s_lshl_b32(s(sADD), s(sSET), 9)
g.global_load_dwordx4(v(WRR, 4), v(vO16), s(pWR, 2), mod=OPT['wnt'])
g.global_load_dwordx4(v(WRR + 4, 4), v(vO16), s(pWR, 2), mod='offset:1024 ' + OPT['wnt'])
g.s_lshl_b32(s(sT1), s(sD), 8)
for i, p in enumerate((pLA, pAI, pCR, pCI)):
    addr(80 + 2 * i, p, s(sT1))
g.s_lshl_b32(s(sT0), s(sC), 19)
g.s_lshl_b32(s(sT1), s(sW), 7)
g.s_add_u32(s(sT0), s(sT0), s(sT1))
g.s_add_u32(s(sT0), s(sT0), WS_PAY)
addr(pPW0, pWS, s(sT0))
addr(pPW1, pPW0, 8 * 32768)
g.s_lshl_b32(s(sT0), s(sKQ), 8)
g.s_lshl_b32(s(sT1), s(sC), 5)
g.s_add_u32(s(sT0), s(sT0), s(sT1))
g.s_mul_i32(s(sT0), s(sT0), 7168)
g.s_lshl_b32(s(sT1), s(sCB), 7)
g.s_add_u32(s(sT0), s(sT0), s(sT1))
addr(pG, pWG, s(sT0))
addr(pU, pWU, s(sT0))

sF0, sF1 = 92, 93
SQ = []


def sq(*fns):
    SQ.append(fns)


def sq_addr(dst, base, off):
    sq(lambda: g.s_add_u32(s(dst), s(base), off), lambda: g.s_addc_u32(s(dst + 1), s(base + 1), 0))


def sfill(n=1):
    for _ in range(n):
        if SQ:
            for f in SQ.pop(0):
                f()


S_ = lambda op, *a_: sq(lambda: getattr(g, op)(*a_))
S_('s_lshl_b32', s(sF0), s(sW), 4)
S_('s_add_u32', s(sF0), s(sF0), WS_HDR)
sq_addr(pHW, pWS, s(sF0))
S_('s_lshl_b32', s(sF0), s(sCB), 6)
S_('s_and_b32', s(sF1), s(sC), 3)
S_('s_lshl_b32', s(sF1), s(sF1), 4)
S_('s_add_u32', s(sF0), s(sF0), s(sF1))
S_('s_lshl_b32', s(sF0), s(sF0), 11)
S_('s_lshl_b32', s(sF1), s(sKQ), 9)
S_('s_add_u32', s(sF0), s(sF0), s(sF1))
sq_addr(pWDB, pWD, s(sF0))
sq_addr(pHR, pWS, WS_HDR)
S_('s_lshl_b32', s(sF0), s(sKQ), 20)
S_('s_and_b32', s(sF1), s(sC), 3)
S_('s_lshl_b32', s(sF1), s(sF1), 18)
S_('s_add_u32', s(sF0), s(sF0), s(sF1))
S_('s_add_u32', s(sF0), s(sF0), WS_PAY)
sq_addr(pXS, pWS, s(sF0))
S_('s_lshl_b32', s(sF0), s(sCG), 15)
S_('s_lshl_b32', s(sF1), s(sC), 10)
S_('s_add_u32', s(sF0), s(sF0), s(sF1))
S_('s_add_u32', s(sF0), s(sF0), WS_PAY)
sq_addr(pPR0, pWS, s(sF0))
sq_addr(pPR1, pPR0, 16384)
S_('s_lshl_b32', s(sF0), s(sC), 6)
S_('s_add_u32', s(sF0), s(sF0), s(sADD))
S_('s_lshl_b32', s(sF0), s(sF0), 11)
S_('s_lshl_b32', s(sF1), s(sCG), 4)
S_('s_add_u32', s(sF0), s(sF0), s(sF1))
sq_addr(pXR0, pX, s(sF0))
sq(lambda: g.s_cmp_eq_u32(s(sSET), 0),
   lambda: g.s_mov_b32(s(sF1), 512 * 2048),
   lambda: g.s_cselect_b32(s(sF1), 1536 * 2048, s(sF1)))
sq_addr(pXR1, pXR0, s(sF1))
sq_addr(pOB, pOUT, s(sF0))
S_('s_lshl_b32', s(sF0), s(sCB), 13)
S_('s_add_u32', s(sF0), s(sF0), WS_HA)
sq_addr(pHAR, pWS, s(sF0))
S_('s_lshl_b32', s(sF0), s(sKQ), 11)
S_('s_lshl_b32', s(sF1), s(sHI), 10)
S_('s_add_u32', s(sF0), s(sF0), s(sF1))
S_('s_and_b32', s(sF1), s(sC), 3)
S_('s_lshl_b32', s(sF1), s(sF1), 7)
S_('s_add_u32', s(sF0), s(sF0), s(sF1))
sq_addr(pHAW, pHAR, s(sF0))
S_('s_lshl_b32', s(sF0), s(sKQ), 5)
S_('s_lshl_b32', s(sF1), s(sC), 2)
S_('s_add_u32', s(sF0), s(sF0), s(sF1))
S_('s_mul_i32', s(sF0), s(sF0), 56)
S_('s_add_u32', s(sF0), s(sF0), s(sCB))
S_('s_lshl_b32', s(sF0), s(sF0), 6)
S_('s_add_u32', s(sF0), s(sF0), WS_HB)
sq_addr(pHBW, pWS, s(sF0))

vL7, vL3, vN, vKQ, vR, vCC = 64, 65, 66, 67, 68, 69
g.v_and_b32(v(vL7), 7, v(vLANE))
g.v_lshrrev_b32(v(vL3), 3, v(vLANE))
g.v_and_b32(v(vN), 15, v(vLANE))
g.v_lshrrev_b32(v(vKQ), 4, v(vLANE))
g.v_bfe_u32(v(vR), v(vLANE), 2, 2)
g.v_and_b32(v(vCC), 3, v(vLANE))
aGT = 179
aTW, aTR, aPS, aGO, aWO, aKW, aKA = 184, 185, 186, 180, 177, 178, 176
g.s_mul_i32(s(sT0), s(sC), TILE_RS)
g.s_add_u32(s(sT0), s(sT0), L_TILE)
g.v_add_u32(v(aTW), s(sT0), v(vO16))
g.v_mul_u32_u24(v(aTR), TILE_RS, v(vR))
g.v_lshl_add_u32(v(aTR), v(vCC), 3, v(aTR))
g.v_lshl_add_u32(v(aTR), v(vKQ), 5, v(aTR))
g.s_lshl_b32(s(sT0), s(sC), 8)
g.s_add_u32(s(sT0), s(sT0), L_TILE)
g.v_add_u32(v(aTR), s(sT0), v(aTR))
g.v_lshlrev_b32(v(aPS), 15, v(vL3))
g.v_lshl_add_u32(v(aPS), v(vL7), 4, v(aPS))
g.v_mul_u32_u24(v(aGO), 4 * 7168, v(vL3))
g.v_lshl_add_u32(v(aGO), v(vL7), 4, v(aGO))
for i in range(1, 4):
    g.v_add_u32(v(aGO + i), 7168 * i, v(aGO))
g.v_lshrrev_b32(v(aWO), 5, v(vLANE))
g.v_lshlrev_b32(v(aWO), 14, v(aWO))
g.v_and_b32(v(aKA), 31, v(vLANE))
g.v_lshl_add_u32(v(aWO), v(aKA), 4, v(aWO))
g.v_lshlrev_b32(v(aKW), 2, v(vLANE))
g.v_add_u32(v(aKW), s(sKGB), v(aKW))
g.v_mul_u32_u24(v(aKA), TAB_RS, v(aKA))
g.v_lshrrev_b32(v(aXNW), 5, v(vLANE))
g.v_lshl_add_u32(v(aKA), v(aXNW), 4, v(aKA))
g.v_add_u32(v(aKA), s(sKGB), v(aKA))
g.s_lshl_b32(s(sT0), s(sC), 3)
g.v_add_u32(v(aXNW), s(sT0), v(vL3))
g.v_lshrrev_b32(v(aGST), 1, v(vL7))
g.v_xor_b32(v(aXNW), v(aXNW), v(aGST))
g.v_mul_u32_u24(v(aGST), CS, v(vL7))
g.v_lshl_add_u32(v(aXNW), v(aXNW), 4, v(aGST))
g.v_mul_u32_u24(v(aGST), 4 * GRS, v(vL3))
g.v_lshl_add_u32(v(aGST), v(vL7), 4, v(aGST))
g.s_mul_i32(s(sT0), s(sC), 32 * GRS)
g.s_add_u32(s(sT0), s(sT0), L_GATE)
g.v_add_u32(v(aGT), s(sT0), v(aGST))
g.s_add_u32(s(sT0), s(sKGB), L_UP - L_KG)
g.v_add_u32(v(aGST), s(sT0), v(aGST))
g.v_lshl_add_u32(v(aE2W), v(vKQ), 2, v(vR))
g.v_mul_u32_u24(v(aE2W), GRS, v(aE2W))
g.v_lshl_add_u32(v(aE2W), v(vCC), 3, v(aE2W))
g.s_cmp_eq_u32(s(sHI), 0)
g.s_mov_b32(s(sT0), L_UP)
g.s_cselect_b32(s(sT0), L_GATE, s(sT0))
g.s_and_b32(s(sT1), s(sC), 3)
g.s_lshl_b32(s(sT1), s(sT1), 5)
g.s_add_u32(s(sT0), s(sT0), s(sT1))
g.v_add_u32(v(aE2W), s(sT0), v(aE2W))
g.v_and_b32(v(aE2A), 1, v(vR))
g.v_lshlrev_b32(v(aE2A), 9, v(aE2A))
g.v_lshl_add_u32(v(aE2A), v(vKQ), 3, v(aE2A))
g.v_add_u32(v(aE2A), L_XS, v(aE2A))
g.v_lshlrev_b32(v(aYB), 1, v(vN))
g.v_sub_u32(v(aEY0), v(aYB), v(vKQ))
g.s_lshr_b32(s(sT0), s(sC), 1)
g.s_mul_i32(s(sT1), s(sC), CS)
g.s_add_u32(s(sT1), s(sT1), L_XN - 512)
for reg, sh in ((aF, 1), (aF2, 0), (aF3, 2)):
    g.v_add_u32(v(aEY1), 36 + sh, v(aEY0))
    g.v_xor_b32(v(aEY1), s(sT0), v(aEY1))
    g.v_lshl_add_u32(v(reg), v(aEY1), 4, s(sT1))
g.v_lshrrev_b32(v(aEY0), 1, v(vKQ))
g.v_add_u32(v(aYB), v(aYB), v(aEY0))
g.v_xor_b32(v(aYB), s(sT0), v(aYB))
g.v_lshlrev_b32(v(aYB), 4, v(aYB))
g.v_and_b32(v(aEY0), 1, v(vKQ))
g.v_lshl_add_u32(v(aYB), v(aEY0), 3, v(aYB))
g.s_mul_i32(s(sT1), s(sC), CSR)
g.s_add_u32(s(sT1), s(sT1), L_YB)
g.v_add_u32(v(aYB), s(sT1), v(aYB))
g.v_lshlrev_b32(v(aOUT), 1, v(vKQ))
g.v_lshrrev_b32(v(aEY0), 1, v(vCC))
g.v_add_u32(v(aOUT), v(aOUT), v(aEY0))
g.v_and_b32(v(vCC), 1, v(vCC))
g.v_lshlrev_b32(v(vCC), 3, v(vCC))
g.s_lshl_b32(s(sT0), s(sC), 7)
g.s_lshl_b32(s(sT1), s(sADD), 1)
g.s_add_u32(s(sT1), s(sT1), s(sT0))
g.s_add_u32(s(sT0), s(sT0), L_YB)
g.s_add_u32(s(sT1), s(sT1), L_XN + PADB)
for hi, (ay, ax) in enumerate(((aEY0, aEX0), (aEY1, aEX1))):
    g.v_add_u32(v(vL7), 4 * hi, v(vR))
    g.v_lshrrev_b32(v(vL3), 1, v(vL7))
    g.v_xor_b32(v(vL3), v(aOUT), v(vL3))
    g.v_lshl_add_u32(v(vL3), v(vL3), 4, v(vCC))
    g.v_mul_u32_u24(v(ay), CSR, v(vL7))
    g.v_add_u32(v(ay), v(ay), v(vL3))
    g.v_add_u32(v(ay), s(sT0), v(ay))
    g.v_mul_u32_u24(v(ax), CS, v(vL7))
    g.v_add_u32(v(ax), v(ax), v(vL3))
    g.v_add_u32(v(ax), s(sT1), v(ax))
g.v_lshlrev_b32(v(aOUT), 11, v(vLANE))
if OPT['ts']:
    g.s_memtime(s(sTS, 2))
    g.s_waitcnt('lgkmcnt(0)')
    g.v_writelane_b32(v(vTID), s(sTS), 30)
    g.s_memrealtime(s(sTS, 2))
    g.s_waitcnt('lgkmcnt(0)')
    g.v_writelane_b32(v(vTID), s(sTS), 32)
stamp('prologue')


def wait_moe(n_moe, n_other):
    if not OPT['guard']:
        g.waitcnt(vm=n_moe)
        return
    lab, lab2 = g.newlabel('wm'), g.newlabel('wm')
    g.s_cmp_eq_u32(s(sMOE), 0)
    g.s_cbranch_scc1(lab)
    with g.guarded('moe'):
        g.waitcnt(vm=n_moe)
        g.s_branch(lab2)
    g.label(lab)
    with g.guarded('!moe'):
        g.waitcnt(vm=n_other)
    g.label(lab2)


def gu_load(i):
    mat, k = i >> 2, i & 3
    if OPT['guard']:
        lab = skip_unless_moe('gu')
    with g.guarded('moe' if OPT['guard'] else 'always'):
        g.global_load_dwordx4(v(GU + 16 * mat + 4 * k, 4), v(aGO + k), s(pU if mat else pG, 2), mod='nt')
    if OPT['guard']:
        g.label(lab)


def wd_load(k):
    lab = g.newlabel('wd')
    if OPT['guard']:
        g.s_and_b32(s(sT5), s(sMOE), s(sHI))
        g.s_cbranch_scc0(lab)
    else:
        g.s_cmp_eq_u32(s(sHI), 0)
        g.s_cbranch_scc1(lab)
    with g.guarded('moe&hi' if OPT['guard'] else 'hi'):
        g.global_load_dwordx4(v(WD + 8 * k, 4), v(aWO), s(pWDB, 2), mod='nt')
        g.global_load_dwordx4(v(WD + 8 * k + 4, 4), v(aWO), s(pWDB, 2), mod='offset:2048 nt')
        if k < 3:
            g.v_add_u32(v(aWO), 4096, v(aWO))
    g.label(lab)


g.v_lshlrev_b32(v(146), 2, v(vLANE))
if OPT['kearly']:
    for i in range(4):
        g.global_load_dword(v(KP + i), v(146), s(80 + 2 * i, 2), mod=OPT['knt'])
    g.waitcnt(vm=(3 if OPT['pf'] else 2) + 4)
    stamp('row landed')
else:
    g.waitcnt(vm=3 if OPT['pf'] else 2)
    stamp('row landed')
    for i in range(4):
        g.global_load_dword(v(KP + i), v(146), s(80 + 2 * i, 2), mod=OPT['knt'])
XF, DV, XB = 96, 112, 128
T0, T1, T2, T3, M2 = 136, 137, 138, 139, 140
g.v_dot2_f32_bf16(v(T0), v(XA), s(sONES), 0)
g.v_dot2_f32_bf16(v(T1), v(XA + 1), s(sONES), 0)
for k in range(2, 8, 2):
    g.v_dot2_f32_bf16(v(T0), v(XA + k), s(sONES), v(T0))
    g.v_dot2_f32_bf16(v(T1), v(XA + k + 1), s(sONES), v(T1))
fl = []
for k in range(8):
    fl.append(lambda k=k: g.v_lshlrev_b32(v(XF + 2 * k), 16, v(XA + k)))
    fl.append(lambda k=k: g.v_and_b32(v(XF + 2 * k + 1), '0xffff0000', v(XA + k)))
fill(fl, 3)
g.v_add_f32(v(T0), v(T0), v(T1))
reduce_op('v_add_f32_dpp', T0, fl)
g.v_readlane_b32(s(sRED), v(T0), 63)
gu_load(0)
g.v_mov_b32(v(T0), hx(f2u(1.0 / 1024)))
g.v_mul_f32(v(T0), s(sRED), v(T0))
round_bf16(M2, T0)
g.v_sub_f32(v(T0), v(T0), v(M2))
for k in range(8):
    g.v_pk_add_f32(v(DV + 2 * k, 2), v(XF + 2 * k, 2), v(M2, 2), mod='op_sel_hi:[1,0] neg_lo:[0,1] neg_hi:[0,1]')
S2A, S2B = 142, 144
g.v_pk_mul_f32(v(S2A, 2), v(DV, 2), v(DV, 2))
g.v_pk_mul_f32(v(S2B, 2), v(DV + 2, 2), v(DV + 2, 2))
for k in range(2, 8, 2):
    g.v_pk_fma_f32(v(S2A, 2), v(DV + 2 * k, 2), v(DV + 2 * k, 2), v(S2A, 2))
    g.v_pk_fma_f32(v(S2B, 2), v(DV + 2 * k + 2, 2), v(DV + 2 * k + 2, 2), v(S2B, 2))
g.v_pk_add_f32(v(S2A, 2), v(S2A, 2), v(S2B, 2))
g.v_add_f32(v(T1), v(S2A), v(S2A + 1))
fl = []
for k in range(8):
    fl.append(lambda k=k: g.v_cvt_pk_bf16_f32(v(XB + k), v(DV + 2 * k), v(DV + 2 * k + 1)))
for k in range(8):
    fl.append(lambda k=k: g.v_lshlrev_b32(v(DV + 2 * k), 16, v(XB + k)))
    fl.append(lambda k=k: g.v_and_b32(v(DV + 2 * k + 1), '0xffff0000', v(XB + k)))
reduce_op('v_add_f32_dpp', T1, fl)
g.v_readlane_b32(s(sRED), v(T1), 63)
gu_load(1)
g.v_mov_b32(v(T1), hx(f2u(1.0 / 1024)))
g.v_mul_f32(v(T1), s(sRED), v(T1))
g.v_fma_f32(v(T1), f'-{v(T0)}', v(T0), v(T1))
g.v_max_f32(v(T1), 0, v(T1))
fill(fl, 1)
g.v_cvt_pk_bf16_f32(v(T1), v(T1), v(T1))
fill(fl, 1)
g.v_and_b32(v(T1), '0xffff0000', v(T1))
g.v_add_f32(v(T1), hx(f2u(1e-5)), v(T1))
g.v_cvt_pk_bf16_f32(v(T1), v(T1), v(T1))
fill(fl, 1)
g.v_and_b32(v(T1), '0xffff0000', v(T1))
g.v_sqrt_f32(v(T1), v(T1))
fill(fl, 2)
g.v_cvt_pk_bf16_f32(v(T1), v(T1), v(T1))
fill(fl, 1)
g.v_and_b32(v(T1), '0xffff0000', v(T1))
g.v_rcp_f32(v(M2), v(T1))
fill(fl, 32)
for k in range(8):
    g.v_pk_mul_f32(v(DV + 2 * k, 2), v(DV + 2 * k, 2), v(M2, 2), mod='op_sel_hi:[1,0]')
gu_load(2)
for k in range(8):
    g.v_cvt_pk_bf16_f32(v(XB + k), v(DV + 2 * k), v(DV + 2 * k + 1))
wait_moe(4 + 3, 4)
g.v_dot2_f32_bf16(v(T2), v(XB), v(WRR), 0)
g.v_dot2_f32_bf16(v(T3), v(XB + 1), v(WRR + 1), 0)
for k in range(2, 8, 2):
    g.v_dot2_f32_bf16(v(T2), v(XB + k), v(WRR + k), v(T2))
    g.v_dot2_f32_bf16(v(T3), v(XB + k + 1), v(WRR + k + 1), v(T3))
fl = []
for k in range(8):
    fl.append(lambda k=k: g.v_lshlrev_b32(v(DV + 2 * k), 16, v(XB + k)))
    fl.append(lambda k=k: g.v_and_b32(v(DV + 2 * k + 1), '0xffff0000', v(XB + k)))
    fl.append(lambda k=k: g.v_cvt_pk_f16_f32(v(XA + k), v(DV + 2 * k), v(DV + 2 * k + 1)))
fl.insert(13, lambda: g.ds_write_b128(v(aTW), v(XA, 4)))
fl.append(lambda: g.ds_write_b128(v(aTW), v(XA + 4, 4), mod='offset:1024'))
fill(fl, 3)
g.v_add_f32(v(T2), v(T2), v(T3))
reduce_op('v_add_f32_dpp', T2, fl)
g.v_readlane_b32(s(sRED), v(T2), 63)
fill(fl, 32)
g.v_mov_b32(v(T3), s(sRED))
g.v_cvt_pk_bf16_f32(v(T3), v(T3), v(T3))
g.s_lshl_b32(s(sT0), s(sW), 3)
g.v_and_b32(v(T3), '0xffff', v(T3))
g.s_add_u32(s(sT0), s(sT0), s(sC))
g.v_xor_b32(v(T2), '0x8000', v(T3))
g.v_xor_b32(v(T1), '0xffff', v(T3))
g.v_cmp_gt_u32('vcc', '0x8000', v(T3))
g.s_sub_u32(s(sT0), '0xffff', s(sT0))
g.s_lshl_b32(s(sT1), s(sC), 2)
g.v_mov_b32(v(T0), s(sT1))
g.v_cndmask_b32(v(T2), v(T1), v(T2), 'vcc')
g.v_lshlrev_b32(v(T2), 16, v(T2))
g.v_or_b32(v(T2), s(sT0), v(T2))
g.ds_write_b32(v(T0), v(T2), mod=f'offset:{L_KEYS}')
g.v_mov_b32(v(T1), 0)
g.ds_write_b32(v(T1), v(T1), mod=f'offset:{L_WTOP}')
g.waitcnt(lgkm=0)
g.s_barrier()
PT = 100
for j in range(2):
    g.ds_read_b64_tr_b16(v(PT + 4 * j, 2), v(aTR), mod=f'offset:{128 * j}')
    g.ds_read_b64_tr_b16(v(PT + 4 * j + 2, 2), v(aTR), mod=f'offset:{128 * j + 4 * TILE_RS}')
gu_load(3)
g.waitcnt(lgkm=2)
g.global_store_dwordx4(v(aPS), v(PT, 4), s(pPW0, 2), mod='sc1')
g.waitcnt(lgkm=0)
g.global_store_dwordx4(v(aPS), v(PT + 4, 4), s(pPW1, 2), mod='sc1')
LT = 184
stamp('payload st')
HD = 60
g.s_add_u32(s(sTAG), s(sEP), 1)
g.s_mul_i32(s(sTAG), s(sTAG), '0x9e3779b1')
g.s_not_b32(s(sNTAG), s(sTAG))
lab = g.newlabel('hdr')
g.s_cmp_lg_u32(s(sC), 1)
g.s_cbranch_scc1(lab)
with g.guarded('w1'):
    KK = 108
    g.v_mov_b32(v(KK + 9), 0)
    g.ds_read_b128(v(KK, 4), v(KK + 9), mod=f'offset:{L_KEYS}')
    g.ds_read_b128(v(KK + 4, 4), v(KK + 9), mod=f'offset:{L_KEYS + 16}')
    g.waitcnt(lgkm=0)
    for k in range(0, 8, 2):
        g.v_max_u32(v(KK + 8), v(KK + k), v(KK + k + 1))
        g.v_min_u32(v(KK + k + 1), v(KK + k), v(KK + k + 1))
        g.v_mov_b32(v(KK + k), v(KK + 8))
    top2_merge(KK, KK + 1, KK + 2, KK + 3, KK + 8)
    top2_merge(KK + 4, KK + 5, KK + 6, KK + 7, KK + 8)
    top2_merge(KK, KK + 1, KK + 4, KK + 5, KK + 8)
    g.v_mov_b32(v(HD), v(KK))
    g.v_mov_b32(v(HD + 1), v(KK + 1))
    g.v_mov_b32(v(HD + 2), s(sTAG))
    g.v_mov_b32(v(HD + 3), s(sNTAG))
g.label(lab)

wait_moe(4 + 2, 2)
g.v_add_u32(v(158), 4096, v(vO16))
vDT, vSC = 80, 81
g.s_and_b32(s(sT0), s(sD), 1)
g.s_lshl_b32(s(sT0), s(sT0), 4)
g.s_lshr_b32(s(sT0), s(sLD), s(sT0))
g.s_lshl_b32(s(sT0), s(sT0), 16)
g.v_mov_b32(v(82), s(sT0))
exp_nat(vDT, 82, 83, 84)
round_bf16(vDT, vDT)
g.v_lshlrev_b32(v(82), 16, v(KP + 2))
g.v_lshlrev_b32(v(83), 16, v(KP + 3))
g.v_and_b32(v(84), '0xffff0000', v(KP + 2))
g.v_and_b32(v(85), '0xffff0000', v(KP + 3))
g.v_add_f32(v(86), f'|{v(82)}|', f'|{v(83)}|')
g.v_add_f32(v(87), f'|{v(84)}|', f'|{v(85)}|')
g.v_add_f32(v(86), v(86), v(87))
KWA = 144
fl = [lambda k=k: g.v_add_u32(v(KWA + k), 4 * TAB_RS * k, v(aKW)) for k in range(14)]
reduce_op('v_add_f32_dpp', 86, fl)
fill(fl, 32)
g.v_readlane_b32(s(sT1), v(86), 63)
g.v_mul_f32(v(86), s(sT1), v(vDT))
g.v_add_f32(v(86), v(86), v(86))
g.v_frexp_exp_i32_f32(v(87), v(86))
g.v_sub_u32(v(86), 14, v(87))
g.v_min_i32(v(86), 120, v(86))
g.v_max_i32(v(86), -120, v(86))
g.v_ldexp_f32(v(vSC), 1.0, v(86))
g.v_sub_u32(v(86), 0, v(86))
g.v_ldexp_f32(v(87), 1.0, v(86))
g.v_mul_f32(v(vSC), v(vSC), v(vDT))
g.v_readfirstlane_b32(s(sINV), v(87))
g.v_add_f32(v(vSC), v(vSC), v(vSC))
AR, AI, CR = 92, 93, 94
E1, E8, E256, E2, E4, EA, EB, CT = 96, 98, 100, 102, 104, 106, 108, 110
TT = 112
PK = 116
ACC = 160


def cexp(dst, p):
    lit = float(p) if p in (1, 2, 4) else hx(f2u(float(p)))
    g.v_mul_f32(v(TT), lit, v(AR))
    g.v_mul_f32(v(TT + 1), lit, v(AI))
    g.v_exp_f32(v(TT), v(TT))
    g.v_fract_f32(v(TT + 1), v(TT + 1))
    g.v_cos_f32(v(dst), v(TT + 1))
    g.v_sin_f32(v(dst + 1), v(TT + 1))
    g.s_nop(0)
    g.v_pk_mul_f32(v(dst, 2), v(dst, 2), v(TT, 2), mod='op_sel_hi:[1,0]')


def cmul(d, x, y, conj_y=False):
    if conj_y:
        g.v_pk_mul_f32(v(CT, 2), v(x, 2), v(y, 2), mod='op_sel:[1,1] op_sel_hi:[1,0]')
        g.v_pk_fma_f32(v(d, 2), v(x, 2), v(y, 2), v(CT, 2), mod='op_sel:[0,0,0] op_sel_hi:[0,1,1] neg_hi:[0,1,0]')
    else:
        g.v_pk_mul_f32(v(CT, 2), v(x, 2), v(y, 2), mod='op_sel:[1,1] op_sel_hi:[1,0] neg_lo:[1,0]')
        g.v_pk_fma_f32(v(d, 2), v(x, 2), v(y, 2), v(CT, 2), mod='op_sel:[0,0,0] op_sel_hi:[0,1,1]')


class Table:
    def __init__(self):
        self.pend = None
        self.rot = 0

    def reg(self):
        r = PK + (self.rot & 3)
        self.rot += 1
        return r

    def put_packed(self, row, r):
        if self.pend is not None:
            row0, r0 = self.pend
            if row0 // 4 == row // 4:
                g.ds_write2_b32(v(KWA + row // 4), v(r0), v(r),
                                mod=f'offset0:{68 * (row0 % 4)} offset1:{68 * (row % 4)}')
                self.pend = None
                return
            self.flush()
        self.pend = (row, r)

    def put(self, row, z):
        r = self.reg()
        g.v_cvt_pk_f16_f32(v(r), v(z), v(z + 1))
        self.put_packed(row, r)

    def flush(self):
        if self.pend is not None:
            row0, r0 = self.pend
            g.ds_write_b32(v(KWA + row0 // 4), v(r0), mod=f'offset:{TAB_RS * (row0 % 4)}')
            self.pend = None


AROW = 32


def capture(fn):
    n = len(g.items)
    fn()
    got = g.items[n:]
    del g.items[n:]
    return [lambda it=it: g.items.append(it) for it in got]


def kgen_setup(h):
    def half(dst, src):
        if h == 0:
            g.v_lshlrev_b32(v(dst), 16, v(src))
        else:
            g.v_and_b32(v(dst), '0xffff0000', v(src))
    half(114, KP)
    exp_nat(AR, 114, 115, 116)
    half(AI, KP + 1)
    g.v_cvt_pk_bf16_f32(v(AR), v(AR), v(AR))
    half(CR, KP + 2)
    g.v_and_b32(v(AR), '0xffff0000', v(AR))
    half(CR + 1, KP + 3)
    g.v_mul_f32(v(AR), v(AR), v(vDT))
    g.v_mul_f32(v(AI), v(AI), v(vDT))
    g.v_mul_f32(v(AR), hx(f2u(-LOG2E)), v(AR))
    g.v_mul_f32(v(AI), hx(f2u(0.15915494309189535)), v(AI))
    g.v_mul_f32(v(CR), v(CR), v(vSC))
    g.v_mul_f32(v(CR + 1), f'-{v(CR + 1)}', v(vSC))
    cexp(E8, 8)
    cexp(E1, 1)
    cexp(E256, 256)


ABL = OPT['ab'].split('+')


def kgen_half(h, hooks, tail_fill):
    T = Table()
    r0 = T.reg()
    g.v_mov_b32(v(r0), '0x3c00')
    T.put_packed(0, r0)
    T.put(1, E8)
    cmul(EA, E8, E8)
    for j in range(2, 32):
        if 'nok' not in ABL:
            T.put(j, EA)
        sfill(1)
        if j < 31 and 'nok' not in ABL:
            cmul(EA, EA, E8)
        sfill(1 if h == 0 else 0)
        if j in hooks:
            hooks[j]()
    stamp(f'b{h}end')
    T.put(AROW, CR)
    cmul(EA, CR, E1, conj_y=True)
    for i in range(1, 8):
        T.put(AROW + i, EA)
        if i < 7:
            cmul(EA, EA, E1, conj_y=True)
    cmul(E2, E1, E1)
    cmul(EA, CR, E256, conj_y=True)
    cmul(E4, E2, E2)
    cmul(E1, E256, E256)
    for i, row in enumerate((8, 9, 10, 11)):
        T.put(AROW + row, EA)
        cmul(EA, EA, E2, conj_y=True)
    cmul(E1, E1, E4)
    cmul(EB, CR, E1, conj_y=True)
    T.put(AROW + 12, EB)
    cmul(E2, EB, E4, conj_y=True)
    T.put(AROW + 13, E2)
    cmul(EB, EB, E256, conj_y=True)
    T.put(AROW + 14, EB)
    cmul(E2, EB, E4, conj_y=True)
    T.put(AROW + 15, E2)
    T.put(AROW + 16, EA)
    cmul(E2, E1, E1)
    cmul(EA, CR, E2, conj_y=True)
    for i in range(4):
        T.put(AROW + 20 + i, EA)
        if i < 3:
            cmul(EA, EA, E256, conj_y=True)
    T.flush()
    stamp(f'a{h}end')
    if 'end' in hooks:
        hooks['end']()
    q = DSQ()
    FA = 120
    toks = []
    def rd(q_):
        b = FA + 8 * (q_ % 3)
        q.op('ds_read_b128', v(b, 4), v(aKA), mod=f'offset:{ATAB + 32 * q_}')
        toks.append(q.op('ds_read_b128', v(b + 4, 4), v(aKA), mod=f'offset:{32 * q_}'))
    for q_ in range(2):
        rd(q_)
    for q_ in range(8):
        if q_ + 2 < 8:
            rd(q_ + 2)
        q.need(toks[q_])
        b = FA + 8 * (q_ % 3)
        c_ = 0 if (h == 0 and q_ == 0) else v(ACC, 16)
        g.v_mfma_f32_32x32x16_f16(v(ACC, 16), v(b, 4), v(b + 4, 4), c_)
        fill(tail_fill, 5)
    fill(tail_fill, 1000)


def prio_hi(p):
    lab = g.newlabel('pr')
    g.s_cmp_eq_u32(s(sHI), 0)
    g.s_cbranch_scc1(lab)
    g.s_setprio(p)
    g.label(lab)


BAL = OPT['bal'].split('+')
aTBL = 158


def tab_load(k):
    if k < 4:
        g.global_load_dwordx4(v(BAND + 4 * k, 4), v(vO16), s(pTAB, 2), mod=f'offset:{1024 * k}')
    else:
        dst = MX if k == 4 else LT + 4 * (k - 5)
        g.global_load_dwordx4(v(dst, 4), v(aTBL), s(pTAB, 2), mod=f'offset:{1024 * (k - 4)}')


def strip_load(j):
    if not OPT['strip']:
        return
    if j == 0:
        g.s_lshr_b32(s(sT0), s(sW), 3)
        g.s_lshl_b32(s(sT0), s(sT0), 3)
        g.s_add_u32(s(sT0), s(sT0), s(sC))
        g.s_lshl_b32(s(sT0), s(sT0), 14)
        g.s_and_b32(s(sT1), s(sW), 7)
        g.s_lshl_b32(s(sT1), s(sT1), 8)
        g.s_add_u32(s(sT0), s(sT0), s(sT1))
        addr(pA, pX, s(sT0))
        g.v_lshrrev_b32(v(XRAW + 7), 4, v(vLANE))
        g.v_lshlrev_b32(v(XRAW + 7), 11, v(XRAW + 7))
        g.v_and_b32(v(XRAW + 6), 15, v(vLANE))
        g.v_lshl_add_u32(v(XRAW + 7), v(XRAW + 6), 4, v(XRAW + 7))
        g.global_load_dwordx4(v(XRAW, 4), v(XRAW + 7), s(pA, 2), mod=OPT['stripmod'])
    else:
        g.v_add_u32(v(XRAW + 6), 4 * 2048, v(XRAW + 7))
        g.global_load_dwordx4(v(XRAW, 4), v(XRAW + 6), s(pA, 2), mod=OPT['stripmod'])


HDRJ = int(OPT['hdrj'])


def publish_header():
    wait_moe(5 + 2, 5)
    g.s_barrier()
    lab = g.newlabel('pub')
    g.s_cmp_lg_u32(s(sC), 1)
    g.s_cbranch_scc1(lab)
    with g.guarded('w1'):
        g.v_mov_b32(v(120), 0)
        set_exec(1, 0)
        g.global_store_dwordx4(v(120), v(HD, 4), s(pHW, 2), mod='sc1')
        g.s_mov_b64('exec', -1)
    g.label(lab)
    stamp('hdr pub')


if 'k' in BAL:
    prio_hi(1)
assert 15 < HDRJ < 19
stamp('ksetup')
kgen_setup(0)
stamp('setup0')
kgen_half(0, {3: lambda: tab_load(0), 5: lambda: tab_load(1), 7: lambda: gu_load(4), 9: lambda: tab_load(2),
              11: lambda: tab_load(3), 13: lambda: gu_load(5), 15: lambda: tab_load(4), HDRJ: publish_header,
              19: lambda: strip_load(0), 20: lambda: tab_load(5), 21: lambda: strip_load(1), 22: lambda: tab_load(6), 24: lambda: gu_load(6), 28: lambda: gu_load(7)},
          capture(lambda: kgen_setup(1)))
stamp('m0end')
wait_moe(2, 0)
stamp('kgen0')
H = TMP + 8


HP = TMP + 16


def hdr_loads():
    for k in range(4):
        g.global_load_dwordx4(v(HP + 4 * k, 4), v(vO16), s(pHR, 2), mod=f'offset:{1024 * k} sc1')


def hdr_poll_issue():
    lab = g.newlabel('hp')
    g.s_cmp_lg_u32(s(sC), 0)
    g.s_cbranch_scc1(lab)
    with g.guarded('w0'):
        hdr_loads()
    g.label(lab)


if 'k' in BAL:
    prio_hi(0)
if 'h' in BAL:
    prio_hi(1)
aKD, aKS = TMP + 33, TMP + 34


def prep_list():
    return [
        lambda: g.v_add_u32(v(94), s(sKGB), v(vO16)),
        lambda: g.v_add_u32(v(109), s(sKGB), v(LT)),
        lambda: g.v_add_u32(v(95), s(sKGB), v(LT + 1)),
        lambda: g.v_mov_b32(v(108), s(sKGB)),
        lambda: g.v_add_u32(v(110), s(sKGB), v(LT + 2)),
        lambda: g.v_add_u32(v(111), s(sKGB), v(LT + 3)),
        lambda: g.v_add_u32(v(82), s(sKGB), v(LT + 4)),
        lambda: g.v_subrev_u32(v(83), 8, v(82)),
        lambda: g.v_add_u32(v(aKD), s(sKGB), v(LT + 5)),
        lambda: g.v_add_u32(v(aKS), s(sKGB), v(LT + 6)),
        lambda: g.v_mov_b32(v(84), v(LT + 7)),
        lambda: g.v_mov_b32(v(96), 0),
        lambda: g.v_mov_b32(v(97), 0),
        lambda: g.v_mov_b32(v(98), 0),
        lambda: g.v_mov_b32(v(99), 0),
        lambda: g.v_add_u32(v(85), 8192, v(vO16)),
    ]


PREP = prep_list()


def gate_write(k):
    lab = skip_unless_moe('gw')
    with g.guarded('moe'):
        g.ds_write_b128(v(aGT), v(GU + 4 * k, 4), mod=f'offset:{GRS * k}')
    g.label(lab)


kgen_half(1, {4: lambda: wd_load(0), 7: lambda: gate_write(0), 11: lambda: wd_load(1), 14: lambda: gate_write(1),
              18: lambda: wd_load(2), 21: lambda: gate_write(2), 25: lambda: wd_load(3), 28: lambda: gate_write(3),
              (int(OPT['pollj']) if OPT['pollj'] != 'end' else 'end'): hdr_poll_issue}, PREP)
assert not SQ, len(SQ)
stamp('kgen1')

g.s_mov_b32(s(sKAB), s(sKGB))
vJ, vH = 92, 93
aKD, aKS = TMP + 33, TMP + 34


lab, lab2 = g.newlabel('nopoll'), g.newlabel('pjoin')
g.s_cmp_lg_u32(s(sC), 0)
g.s_cbranch_scc1(lab)
with g.guarded('w0'):
    fl = []
    g.s_mov_b32(s(sCNT), 0)
    chk, again, done = g.newlabel('chk'), g.newlabel('again'), g.newlabel('pdone')
    g.s_branch(chk)
    g.label(again)
    hdr_loads()
    g.label(chk)
    g.waitcnt(vm=0)
    g.v_xor_b32(v(H + 6), s(sTAG), v(HP + 2))
    g.v_xor_b32(v(H + 7), s(sNTAG), v(HP + 3))
    g.v_or_b32(v(H + 6), v(H + 6), v(H + 7))
    for k in range(1, 4):
        g.v_xor_b32(v(H + 4), s(sTAG), v(HP + 4 * k + 2))
        g.v_xor_b32(v(H + 7), s(sNTAG), v(HP + 4 * k + 3))
        g.v_or3_b32(v(H + 6), v(H + 6), v(H + 4), v(H + 7))
    g.v_cmp_eq_u32('vcc', 0, v(H + 6))
    g.s_nop(1)
    g.s_cmp_eq_u64('vcc', 'exec')
    g.s_cbranch_scc1(done)
    poll_fail(again, 1)
    g.label(done)
    top2_merge(HP, HP + 1, HP + 4, HP + 5, H)
    top2_merge(HP + 8, HP + 9, HP + 12, HP + 13, H)
    top2_merge(HP, HP + 1, HP + 8, HP + 9, H)
    g.v_mov_b32(v(H + 6), v(HP))
    reduce_op('v_max_u32_dpp', H + 6, fl)
    g.v_readlane_b32(s(sK0), v(H + 6), 63)
    fill(fl, 2)
    g.v_cmp_eq_u32('vcc', s(sK0), v(HP))
    fill(fl, 2)
    g.v_cndmask_b32(v(H + 6), v(HP), v(HP + 1), 'vcc')
    reduce_op('v_max_u32_dpp', H + 6, fl)
    g.v_readlane_b32(s(sK1), v(H + 6), 63)
    fill(fl, 2)
    for j, sk in enumerate((sK0, sK1)):
        g.s_andn2_b32(s(sT0), 2047, s(sk))
        g.s_lshr_b32(s(sT1), s(sT0), 3)
        g.s_lshl_b32(s(sT1), s(sT1), 7)
        g.s_and_b32(s(sT0), s(sT0), 7)
        g.s_lshl1_add_u32(s(sT0), s(sT0), s(sT1))
        g.v_mov_b32(v(H + 2 + j), s(sT0))
        g.v_mov_b32(v(H + j), s(sk))
    g.v_mov_b32(v(H + 4), 0)
    g.ds_write_b128(v(H + 4), v(H, 4), mod=f'offset:{L_WTOP}')
    fill(fl, 100)
    g.waitcnt(lgkm=0)
    g.s_branch(lab2)
g.label(lab)
g.label(lab2)
lab = skip_unless_moe('uw')
with g.guarded('moe'):
    l1, l2 = g.newlabel('uwh'), g.newlabel('uwj')
    g.s_cmp_eq_u32(s(sHI), 0)
    g.s_cbranch_scc0(l1)
    with g.guarded('!hi'):
        g.waitcnt(vm=0)
        g.s_branch(l2)
    g.label(l1)
    with g.guarded('hi'):
        g.waitcnt(vm=8)
    g.label(l2)
    for i in range(4):
        g.ds_write_b128(v(aGST), v(GU + 16 + 4 * i, 4), mod=f'offset:{GRS * i}')
g.label(lab)
PR, XSEL = TMP + 16, TMP + 32
T8 = TMP + 35
g.v_mov_b32(v(T8), 0)
g.s_mov_b32(s(sCNT), 0)
spin, go = g.newlabel('spin'), g.newlabel('go')
g.label(spin)
g.ds_read_b128(v(H, 4), v(T8), mod=f'offset:{L_WTOP}')
g.waitcnt(lgkm=0)
g.v_readfirstlane_b32(s(sK0), v(H))
g.s_cmp_lg_u32(s(sK0), 0)
g.s_cbranch_scc1(go)
g.s_sleep(1)
g.s_add_u32(s(sCNT), s(sCNT), 1)
g.s_cmp_lt_u32(s(sCNT), 4 * MAXSPIN)
g.s_cbranch_scc1(spin)
g.s_branch('L_end')
g.label(go)
stamp('polled')
g.s_setprio(2)
g.global_load_dwordx4(v(PR, 4), v(vO16), s(pPR0, 2), mod=OPT['pnt'])
g.global_load_dwordx4(v(PR + 4, 4), v(85), s(pPR0, 2), mod=OPT['pnt'])
g.global_load_dwordx4(v(PR + 8, 4), v(vO16), s(pPR1, 2), mod=OPT['pnt'])
g.global_load_dwordx4(v(PR + 12, 4), v(85), s(pPR1, 2), mod=OPT['pnt'])
g.s_cmp_eq_u32(s(sHI), 0)
g.s_cselect_b64('vcc', 0, -1)
g.v_cndmask_b32(v(T8), v(H + 2), v(H + 3), 'vcc')
g.v_add_u32(v(84), v(84), v(T8))
g.global_load_ushort(v(XSEL), v(84), s(pXS, 2), mod='sc1')
g.s_setprio(0)
g.ds_write_b128(v(94), v(96, 4))
g.ds_write_b128(v(94), v(96, 4), mod='offset:1024')
g.v_readfirstlane_b32(s(sK1), v(H + 1))
g.s_andn2_b32(s(sI0), 2047, s(sK0))
g.s_andn2_b32(s(sI1), 2047, s(sK1))
stamp('pl issued')
if 'a' in BAL:
    prio_hi(1)

g.v_cvt_pk_f16_f32(v(100), v(ACC + 3), v(ACC + 2))
g.v_cvt_pk_f16_f32(v(101), v(ACC + 1), v(ACC))
g.v_cvt_pk_f16_f32(v(104), v(ACC + 8), v(ACC + 7))
g.v_cvt_pk_f16_f32(v(105), v(ACC + 6), v(ACC + 6))
g.ds_write_b64(v(109), v(100, 2))
g.v_cvt_pk_f16_f32(v(106), v(ACC + 6), v(ACC + 5))
g.v_cvt_pk_f16_f32(v(107), v(ACC + 4), v(ACC + 4))
g.v_cvt_pk_f16_f32(v(103), v(ACC + 8), v(ACC + 8))
g.v_cvt_f16_f32(v(112 + 3), v(ACC + 7))
g.v_lshlrev_b32(v(102), 16, v(103))
set_exec(-1, 0)
g.ds_write_b128(v(95), v(104, 4))
set_exec('0x80000000', 0)
g.ds_write_b64(v(108), v(102, 2), mod=f'offset:{2 * 28}')
g.s_mov_b64('exec', -1)
g.v_readlane_b32(s(sK1024), v(112 + 3), 63)
g.v_writelane_b32(v(112 + 3), 0, 63)
for k in range(4):
    if k < 3:
        g.v_cvt_f16_f32(v(112 + k), v(ACC + 4 + k))
    g.v_cvt_f16_f32(v(116 + k), v(ACC + 8 + k))
g.s_mov_b32('exec_lo', 0)
for k, off in enumerate((64 + 16, 16, 64, 0)):
    g.ds_write_b16(v(110), v(112 + k), mod=f'offset:{2 * off}')
for k in range(4):
    g.ds_write_b16(v(111), v(116 + k), mod=f'offset:{2 * (48 - 16 * k)}')
g.s_mov_b64('exec', -1)
stamp('arrays')
for p_ in range(4):
    b = 128 + 8 * p_
    g.ds_read_b64(v(b, 2), v(83), mod=f'offset:{512 * p_}')
    g.ds_read_b64(v(b + 2, 2), v(82), mod=f'offset:{512 * p_}')
g.s_lshl_b32(s(sT1), s(sK1024), 16)
g.s_and_b32(s(sT2), s(sK1024), '0xffff')
g.s_or_b32(s(sK1024), s(sT1), s(sT2))
for p_ in range(4):
    b = 128 + 8 * p_
    g.waitcnt(lgkm=min(15, 2 * (3 - p_) + 3 * p_))
    g.v_alignbit_b32(v(b + 4), v(b + 1), v(b), 16)
    g.v_alignbit_b32(v(b + 5), v(b + 2), v(b + 1), 16)
    g.v_alignbit_b32(v(b + 7), v(b + 3), v(b + 2), 16)
    g.v_mov_b32(v(b + 6), v(b + 5))
    g.v_mov_b32(v(b), v(b + 1))
    g.v_mov_b32(v(b + 1), v(b + 2))
    g.ds_write_b64(v(82), v(b + 4, 2), mod=f'offset:{3 * KCP + 512 * p_}')
    g.ds_write_b64(v(82), v(b + 6, 2), mod=f'offset:{1 * KCP + 512 * p_}')
    g.ds_write_b64(v(82), v(b, 2), mod=f'offset:{2 * KCP + 512 * p_}')
stamp('copies')


pHBR = 96
sMK = (98, 56)
sLN = (58, 59)
sOWN, sTOK, sKEY = 92, 93, 18


sDEL = 18


def epi_scalars():
    sq(lambda: g.s_cmp_eq_u32(s(sSET), 0),
       lambda: g.s_mov_b32(s(sDEL), 512),
       lambda: g.s_cselect_b32(s(sDEL), 1536, s(sDEL)))
    S_('s_lshl_b32', s(sT0), s(sC), 6)
    S_('s_add_u32', s(sT0), s(sT0), s(sADD))
    S_('s_sub_u32', s(sLN[0]), s(sI0), s(sT0))
    S_('s_sub_u32', s(sLN[1]), s(sI1), s(sT0))
    for rho in range(2):
        S_('s_mov_b64', s(sMK[rho], 2), -1)
        for tau in range(2):
            first = (lambda tau=tau: g.s_mov_b32(s(sT1), s(sLN[tau]))) if rho == 0 else \
                    (lambda tau=tau: g.s_sub_u32(s(sT1), s(sLN[tau]), s(sDEL)))
            sq(first,
               lambda: g.s_lshl_b64(s(sT2, 2), 1, s(sT1)),
               lambda: g.s_cmp_lt_u32(s(sT1), 64),
               lambda: g.s_cselect_b64(s(sT2, 2), s(sT2, 2), 0),
               lambda rho=rho: g.s_andn2_b64(s(sMK[rho], 2), s(sMK[rho], 2), s(sT2, 2)))
    sq(lambda: g.s_sub_u32(s(sT0), s(sLN[0]), s(sDEL)),
       lambda: g.s_min_u32(s(sT0), s(sT0), s(sLN[0])))
    sq(lambda: g.s_sub_u32(s(sT1), s(sLN[1]), s(sDEL)),
       lambda: g.s_min_u32(s(sT1), s(sT1), s(sLN[1])))
    S_('s_min_u32', s(sOWN), s(sT0), s(sT1))
    S_('s_mov_b32', s(sOW0), s(sT0))
    S_('s_mov_b32', s(sOW1), s(sT1))
    sq(lambda: g.s_cmp_lt_u32(s(sT0), 64),
       lambda: g.s_cselect_b32(s(sT0), 0, 128))
    S_('s_add_u32', s(sT0), s(sT0), s(sCG))
    S_('s_mul_i32', s(sT0), s(sT0), 56 * 64)
    S_('s_add_u32', s(sT0), s(sT0), WS_HB)
    sq_addr(pHBR, pWS, s(sT0))
    S_('s_lshl_b32', s(sT0), s(sDEL), 11)
    sq_addr(pA, pOB, s(sT0))


sOW0, sOW1 = 52, 19
for k in range(4):
    g.s_lshl_b32(s(sDF + 2 * k), s(sDK + k), 16)
    g.s_and_b32(s(sDF + 2 * k + 1), s(sDK + k), '0xffff0000')
epi_scalars()


def kread(dst, addr_v, off):
    if 'nofrag' not in ABL:
        g.ds_read_b64(v(dst, 2), v(addr_v), mod=f'offset:{off}')
    sfill(1)


for sp in range(17):
    kread(KD(sp), aKD, 64 * (16 - sp))
    kread(KD(sp) + 2, aKD, 64 * (16 - sp) + 8)
for d in (2, 3, 4):
    for p_, (ta, tb) in enumerate(((E_T5O, E_T3E), (E_T5E, E_T3O))):
        kread(KS2(d, p_), aKS, 2 * (ta + 79 - 16 * d))
        kread(KS2(d, p_) + 2, aKS, 2 * (tb + 79 - 16 * d))
for d in (4, 5, 6, 7):
    kread(KS3(d), aKS, 2 * (E_T7 + 127 - 16 * d))
    kread(KS3(d) + 2, aKS, 2 * (E_T9 + 127 - 16 * d))
sfill(100)
g.waitcnt(vm=5, lgkm=0)
stamp('fragreads')
stamp('gu staged')
if 'a' in BAL:
    prio_hi(0)

g.s_barrier()
g.s_mul_i32(s(sT0), s(sC), CS)
g.v_add_u32(v(H), s(sT0), v(vO16))
for k in range(4):
    g.v_mov_b32(v(H + 4 + k), 0)
set_exec(-1, 15)
g.ds_write_b128(v(H), v(H + 4, 4), mod=f'offset:{L_XN}')
g.s_mov_b64('exec', -1)
g.s_lshl_b32(s(sT0), s(sC), 7)
g.s_add_u32(s(sT0), s(sT0), L_XS)
g.v_lshlrev_b32(v(H), 1, v(vLANE))
g.v_add_u32(v(H), s(sT0), v(H))
g.waitcnt(vm=1)
stamp('pay landed')
for k in range(4):
    g.v_and_b32(v(KX + k), s(sK1024), v(MX + k))
for i in range(4):
    g.ds_write_b128(v(aXNW), v(PR + 4 * i, 4), mod=f'offset:{L_XN + PADB + 1024 * i}')
stamp('paywr')
g.waitcnt(vm=0)
stamp('xsel landed')
if OPT['x0early']:
    g.global_load_dwordx4(v(XRAW, 4), v(aOUT), s(pXR0, 2), mod=OPT['xnt'])
    if OPT['x0early'] == 2:
        g.global_load_dwordx4(v(XRAW + 4, 4), v(aOUT), s(pXR1, 2), mod=OPT['xnt'])
g.v_cvt_f32_f16(v(XSEL), v(XSEL))
g.v_cvt_pk_bf16_f32(v(XSEL), v(XSEL), v(XSEL))
g.ds_write_b16(v(H), v(XSEL))
g.waitcnt(lgkm=0)
stamp('prebar')
g.s_barrier()
stamp('staged')

E2B, E2C, E2T = GU, GU + 24, GU + 28
lab = skip_unless_moe('noE2')
with g.guarded('moe'):
    q = DSQ()
    toks = []
    g.s_cmp_eq_u32(s(sHI), 0)
    g.s_mov_b32(s(sT0), KG_SZ)
    g.s_cselect_b32(s(sT0), 32 * GRS, s(sT0))
    def e2rd(k):
        b = E2B + 8 * (k % 3)
        q.op('ds_read_b64_tr_b16', v(b, 2), v(aE2W))
        q.op('ds_read_b64_tr_b16', v(b + 2, 2), v(aE2W), mod=f'offset:{16 * GRS}')
        q.op('ds_read_b64', v(b + 4, 2), v(aE2A), mod=f'offset:{64 * k}')
        toks.append(q.op('ds_read_b64', v(b + 6, 2), v(aE2A), mod=f'offset:{64 * k + 32}'))
        if k < 7:
            g.v_add_u32(v(aE2W), s(sT0), v(aE2W))
    for k in range(3):
        e2rd(k)
    g.v_lshrrev_b32(v(E2T), 4, v(vLANE))
    g.v_lshlrev_b32(v(E2T), 9, v(E2T))
    g.v_and_b32(v(E2T + 2), 15, v(vLANE))
    g.v_lshl_add_u32(v(E2T), v(E2T + 2), 3, v(E2T))
    for k in range(8):
        q.need(toks[k])
        b = E2B + 8 * (k % 3)
        g.v_mfma_f32_16x16x32_bf16(v(E2C, 4), v(b + 4, 4), v(b, 4), 0 if k == 0 else v(E2C, 4))
        if k + 3 < 8:
            e2rd(k + 3)
    g.v_mov_b32(v(E2C + 1), s(sTAG))
    set_exec(-1, 0)
    g.global_store_dwordx2(v(E2T), v(E2C, 2), s(pHAW, 2), mod='sc1')
    g.s_mov_b64('exec', -1)
g.label(lab)
g.s_barrier()
stamp('E2')


ACCY = TMP
FB_ = TMP + 16
NFB = 5
DT_ = GU
PF = [GU + 24, GU + 28]
HAV = WD + 24


def ha_poll_issue():
    lab = skip_unless_moe('hap')
    with g.guarded('moe'):
        g.v_lshrrev_b32(v(HAV + 4), 4, v(vLANE))
        g.v_lshlrev_b32(v(HAV + 4), 11, v(HAV + 4))
        g.v_bfe_u32(v(HAV + 5), v(vLANE), 2, 2)
        g.v_lshlrev_b32(v(HAV + 5), 9, v(HAV + 5))
        g.v_add_u32(v(HAV + 4), v(HAV + 4), v(HAV + 5))
        g.v_and_b32(v(HAV + 5), 3, v(vLANE))
        g.v_lshl_add_u32(v(HAV + 4), v(HAV + 5), 4, v(HAV + 4))
        g.s_lshl_b32(s(sT5), s(sC), 6)
        g.v_add_u32(v(HAV + 4), s(sT5), v(HAV + 4))
        g.global_load_dwordx4(v(HAV, 4), v(HAV + 4), s(pHAR, 2), mod='sc1')
    g.label(lab)
    if OPT['x1late']:
        g.global_load_dwordx4(v(XRAW + 4, 4), v(aOUT), s(pXR1, 2), mod=OPT['xnt'])


sSLO, sSHI = 52 + 0, 0
EP_SEL = (sT4, sT5)


def epi_pair(rho, k, w, XNR, YR, OUTR, SP):
    sLO, sHI_ = EP_SEL
    xn, y, x = v(XNR + k), v(YR + k), v(XRAW + 4 * rho + k)
    a0, a1, b0, b1, c0, c1 = w, w + 1, w + 2, w + 3, w + 4, w + 5
    sel = lambda hh: f'op_sel:[{hh},0,0] op_sel_hi:[1,0,0]'
    sp = SP + k
    return [
        lambda: g.v_fma_mix_f32(v(a0), xn, s(sNL2E), 0, mod=sel(0)),
        lambda: g.v_fma_mix_f32(v(a1), xn, s(sNL2E), 0, mod=sel(1)),
        lambda: g.v_fma_mix_f32(v(b0), xn, s(sDF + 2 * k), 0, mod=sel(0)),
        lambda: g.v_fma_mix_f32(v(b1), xn, s(sDF + 2 * k + 1), 0, mod=sel(1)),
        lambda: g.v_exp_f32(v(a0), v(a0)),
        lambda: g.v_exp_f32(v(a1), v(a1)),
        lambda: g.v_cvt_pk_bf16_f32(v(b0), v(b0), v(b1)),
        lambda: g.v_add_f32(v(a0), 1.0, v(a0)),
        lambda: g.v_add_f32(v(a1), 1.0, v(a1)),
        lambda: g.v_and_b32(v(b1), '0xffff0000', v(b0)),
        lambda: g.v_lshlrev_b32(v(b0), 16, v(b0)),
        lambda: g.v_rcp_f32(v(a0), v(a0)),
        lambda: g.v_rcp_f32(v(a1), v(a1)),
        lambda: g.v_dot2_f32_bf16(v(c0), y, s(sLO), v(b0)),
        lambda: g.v_dot2_f32_bf16(v(c1), y, s(sHI_), v(b1)),
        lambda: g.v_fma_mix_f32(v(a0), xn, v(a0), 0, mod=sel(0)),
        lambda: g.v_fma_mix_f32(v(a1), xn, v(a1), 0, mod=sel(1)),
        lambda: g.v_cvt_pk_bf16_f32(v(sp), v(c0), v(c1)),
        lambda: g.v_cvt_pk_bf16_f32(v(a0), v(a0), v(a1)),
        lambda: g.v_and_b32(v(a1), '0xffff0000', v(a0)),
        lambda: g.v_and_b32(v(a0), '0xffff', v(a0)),
        lambda: g.v_dot2_f32_bf16(v(c1), v(sp), v(a1), 0),
        lambda: g.v_dot2_f32_bf16(v(c0), v(sp), v(a0), 0),
        lambda: g.v_cvt_pk_bf16_f32(v(c0), v(c0), v(c1)),
        lambda: g.v_and_b32(v(c1), '0xffff0000', v(c0)),
        lambda: g.v_lshlrev_b32(v(c0), 16, v(c0)),
        lambda: g.v_dot2_f32_bf16(v(a1), x, s(sHI_), v(c1)),
        lambda: g.v_dot2_f32_bf16(v(a0), x, s(sLO), v(c0)),
        lambda: g.v_cvt_pk_bf16_f32(v(OUTR + k), v(a0), v(a1)),
    ]


def interleave(*lists):
    for grp in zip(*lists):
        for f in grp:
            f()


def y_to_lds(slots, tmp):
    g.v_mov_b32(v(tmp + 4), s(sINV))
    for t in slots:
        g.v_pk_mul_f32(v(ACCY + 4 * t, 2), v(ACCY + 4 * t, 2), v(tmp + 4, 2), mod='op_sel_hi:[1,0]')
        g.v_pk_mul_f32(v(ACCY + 4 * t + 2, 2), v(ACCY + 4 * t + 2, 2), v(tmp + 4, 2), mod='op_sel_hi:[1,0]')
    for i, t in enumerate(slots):
        g.v_cvt_pk_bf16_f32(v(tmp + 2 * i), v(ACCY + 4 * t), v(ACCY + 4 * t + 1))
        g.v_cvt_pk_bf16_f32(v(tmp + 2 * i + 1), v(ACCY + 4 * t + 2), v(ACCY + 4 * t + 3))
        g.ds_write_b64(v(aYB), v(tmp + 2 * i, 2), mod=f'offset:{512 * t}')


def epi_round(rho, vm_wait):
    W0, XNR, YR, OUTR, SP = GU, GU + 24, GU + 28, WD + 16, WD + 20
    for hi, (ay, ax) in enumerate(((aEY0, aEX0), (aEY1, aEX1))):
        g.ds_read_b64_tr_b16(v(XNR + 2 * hi, 2), v(ax))
        g.ds_read_b64_tr_b16(v(YR + 2 * hi, 2), v(ay), mod=f'offset:{1024 * rho}')
    g.s_mov_b32(s(EP_SEL[0]), '0x3f80')
    g.s_mov_b32(s(EP_SEL[1]), '0x3f800000')
    g.waitcnt(vm=vm_wait, lgkm=0)
    if 'noepi' not in ABL:
        interleave(*[epi_pair(rho, k, W0 + 6 * k, XNR, YR, OUTR, SP) for k in range(4)])
    for tau in range(2):
        lab = g.newlabel('sel')
        if rho == 0:
            g.s_cmp_lt_u32(s(sLN[tau]), 64)
        else:
            g.s_sub_u32(s(EP_SEL[0]), s(sLN[tau]), s(sDEL))
            g.s_cmp_lt_u32(s(EP_SEL[0]), 64)
        g.s_cbranch_scc0(lab)
        with g.guarded('rare'):
            g.s_lshl_b64('vcc', 1, s(sLN[tau] if rho == 0 else EP_SEL[0]))
            g.s_mov_b64('exec', 'vcc')
            g.v_mov_b32(v(W0), 0)
            g.ds_write_b128(v(W0), v(SP, 4), mod=f'offset:{L_SROW + 32 * tau}')
            g.ds_write_b128(v(W0), v(XRAW + 4 * rho, 4), mod=f'offset:{L_SROW + 32 * tau + 16}')
            g.s_mov_b64('exec', -1)
        g.label(lab)
    g.s_mov_b64('exec', s(sMK[rho], 2))
    if 'nostore' not in ABL:
        g.global_store_dwordx4(v(aOUT), v(OUTR, 4), s(pOB if rho == 0 else pA, 2), mod=OPT['outmod'])
    g.s_mov_b64('exec', -1)


aE3W, aE3W2, aE3A, aE3S, aE3H = WD, WD + 1, WD + 2, WD + 3, WD + 4


def e3_addresses():
    X3, X7 = WD + 5, WD + 6
    return [
        lambda: g.v_lshrrev_b32(v(X3), 4, v(vLANE)),
        lambda: g.v_bfe_u32(v(aE3W), v(vLANE), 2, 2),
        lambda: g.v_lshl_add_u32(v(aE3W), v(X3), 2, v(aE3W)),
        lambda: g.v_mul_u32_u24(v(aE3W), WDRS, v(aE3W)),
        lambda: g.v_and_b32(v(X7), 3, v(vLANE)),
        lambda: g.v_lshl_add_u32(v(aE3W), v(X7), 3, v(aE3W)),
        lambda: (g.s_lshl_b32(s(sT4), s(sC), 6), g.s_add_u32(s(sT4), s(sT4), L_WST),
                 g.v_add_u32(v(aE3W), s(sT4), v(aE3W))),
        lambda: g.v_bfe_u32(v(aE3A), v(vLANE), 2, 1),
        lambda: g.v_lshlrev_b32(v(aE3A), 7, v(aE3A)),
        lambda: g.v_lshl_add_u32(v(aE3H), v(X7), 2, v(aE3A)),
        lambda: g.v_lshl_add_u32(v(aE3A), v(X3), 3, v(aE3A)),
        lambda: g.v_add_u32(v(aE3A), L_HS, v(aE3A)),
        lambda: (g.s_lshl_b32(s(sT4), s(sC), 4), g.s_add_u32(s(sT4), s(sT4), L_HS),
                 g.v_add_u32(v(aE3H), s(sT4), v(aE3H))),
        lambda: g.v_bfe_u32(v(aE3S), v(vLANE), 4, 1),
        lambda: g.v_mul_u32_u24(v(aE3S), 128 * 56, v(aE3S)),
        lambda: g.v_lshrrev_b32(v(X7), 5, v(vLANE)),
        lambda: g.v_bfe_u32(v(X3), v(vLANE), 3, 1),
        lambda: g.v_lshl_add_u32(v(X7), v(X7), 1, v(X3)),
        lambda: g.v_mul_u32_u24(v(X7), 56, v(X7)),
        lambda: g.v_add_u32(v(aE3S), v(aE3S), v(X7)),
        lambda: g.v_lshlrev_b32(v(aE3S), 6, v(aE3S)),
        lambda: g.v_and_b32(v(X7), 7, v(vLANE)),
        lambda: g.v_lshl_add_u32(v(aE3S), v(X7), 3, v(aE3S)),
    ]


def e3():
    T = GU
    lab_noE3 = skip_unless_moe('noE3')
    with g.guarded('moe'):
        g.s_mov_b32(s(sCNT), 0)
        chk, again, done = g.newlabel('chk'), g.newlabel('again'), g.newlabel('pdone')
        if OPT['x1late']:
            g.waitcnt(vm=1)
        g.s_branch(chk)
        g.label(again)
        g.global_load_dwordx4(v(HAV, 4), v(HAV + 4), s(pHAR, 2), mod='sc1')
        g.waitcnt(vm=0)
        g.label(chk)
        if not OPT['x1late']:
            g.waitcnt(vm=0)
        g.v_xor_b32(v(T), s(sTAG), v(HAV + 1))
        g.v_xor_b32(v(T + 1), s(sTAG), v(HAV + 3))
        g.v_or_b32(v(T), v(T), v(T + 1))
        g.v_cmp_eq_u32('vcc', 0, v(T))
        g.s_nop(1)
        g.s_cmp_eq_u64('vcc', 'exec')
        g.s_cbranch_scc1(done)
        if 'noha' not in ABL:
            poll_fail(again, 2)
        g.label(done)
        stamp('HAok')
        A0, A1 = T, T + 1
        g.v_mov_b32(v(A0), v(HAV))
        g.v_mov_b32(v(A1), v(HAV + 2))
        g.v_mov_b32(v(T + 2), v(HAV))
        g.v_mov_b32(v(T + 3), v(HAV + 2))
        g.v_permlane32_swap_b32(v(A0), v(T + 2))
        g.v_permlane32_swap_b32(v(A1), v(T + 3))
        g.v_add_f32(v(A0), v(A0), v(T + 2))
        g.v_add_f32(v(A1), v(A1), v(T + 3))
        g.v_mov_b32(v(T + 2), v(A0))
        g.v_mov_b32(v(T + 3), v(A1))
        g.v_permlane16_swap_b32(v(A0), v(T + 2))
        g.v_permlane16_swap_b32(v(A1), v(T + 3))
        g.v_add_f32(v(A0), v(A0), v(T + 2))
        g.v_add_f32(v(A1), v(A1), v(T + 3))
        g.v_cvt_pk_bf16_f32(v(A0), v(A0), v(A1))
        g.v_mov_b32_dpp(v(T + 4), v(A0), mod=f'row_ror:8 {DPP}')
        unpack_bf16(T + 2, T + 3, A0)
        g.v_mul_f32(v(T + 6), hx(f2u(-LOG2E)), v(T + 2))
        g.v_mul_f32(v(T + 7), hx(f2u(-LOG2E)), v(T + 3))
        g.v_exp_f32(v(T + 6), v(T + 6))
        g.v_exp_f32(v(T + 7), v(T + 7))
        g.v_add_f32(v(T + 6), 1.0, v(T + 6))
        g.v_add_f32(v(T + 7), 1.0, v(T + 7))
        g.v_rcp_f32(v(T + 6), v(T + 6))
        g.v_rcp_f32(v(T + 7), v(T + 7))
        g.v_pk_mul_f32(v(T + 2, 2), v(T + 2, 2), v(T + 6, 2))
        g.v_cvt_pk_bf16_f32(v(T + 2), v(T + 2), v(T + 3))
        unpack_bf16(T + 6, T + 7, T + 4)
        g.v_and_b32(v(T + 3), '0xffff0000', v(T + 2))
        g.v_lshlrev_b32(v(T + 2), 16, v(T + 2))
        g.v_pk_mul_f32(v(T + 2, 2), v(T + 2, 2), v(T + 6, 2))
        g.v_cvt_pk_bf16_f32(v(T + 2), v(T + 2), v(T + 3))
        set_exec('0xff', 0)
        g.ds_write_b32(v(aE3H), v(T + 2))
        g.s_mov_b64('exec', -1)
    g.label(lab_noE3)
    g.waitcnt(lgkm=0)
    stamp('hdone')
    g.s_barrier()
    stamp('hbar')
    lab = skip_unless_moe('noDown')
    with g.guarded('moe'):
        X4, X5, X6 = aE3W, aE3A, aE3S
        HB_, WB_, DA = T, T + 8, T + 24
        for k in range(2):
            g.ds_read_b64(v(HB_ + 4 * k, 2), v(X5), mod=f'offset:{64 * k}')
            g.ds_read_b64(v(HB_ + 4 * k + 2, 2), v(X5), mod=f'offset:{64 * k + 32}')
        for j in range(2):
            for k in range(2):
                b = WB_ + 8 * j + 4 * k
                g.ds_read_b64_tr_b16(v(b, 2), v(X4), mod=f'offset:{32 * WDRS * k + 32 * j}')
                g.ds_read_b64_tr_b16(v(b + 2, 2), v(X4), mod=f'offset:{32 * WDRS * k + 16 * WDRS + 32 * j}')
        g.waitcnt(lgkm=0)
        for k in range(2):
            for j in range(2):
                g.v_mfma_f32_16x16x32_bf16(v(DA + 4 * j, 4), v(HB_ + 4 * k, 4), v(WB_ + 8 * j + 4 * k, 4),
                                           0 if k == 0 else v(DA + 4 * j, 4))
        g.v_mov_b32(v(DA + 1), s(sTAG))
        g.s_mov_b32('exec_lo', 0)
        g.v_mov_b32(v(DA), v(DA + 4))
        g.s_mov_b32('exec_lo', -1)
        g.global_store_dwordx2(v(X6), v(DA, 2), s(pHBW, 2), mod='sc1')
    g.label(lab)
    stamp('E3')


def conv(tiles):
    slot = {t: i for i, t in enumerate(tiles)}
    started = set()
    def mm(t, a_, b_):
        acc = v(ACCY + 4 * slot[t], 4)
        g.v_mfma_f32_16x16x32_f16(acc, a_, b_, acc if t in started else 0)
        started.add(t)
    q = DSQ()
    direct = []
    us = sorted({8 * t - sp for t in tiles for sp in range(17) if 8 * t - sp >= -7})
    for u in us:
        def w_(f, u=u):
            for t in tiles:
                sp = 8 * t - u
                if 0 <= sp <= 16 and ('nodir' not in ABL or sp == 0):
                    mm(t, v(KD(sp), 4), f)
        direct.append((aF, 64 * (u + 8), w_))
    xsteps = [(aF3, 64 * (8 * t - 32 + 8), lambda f, t=t: mm(t, v(KX, 4), f)) for t in tiles if t >= 3]
    if tiles[0] == 2:
        direct = direct[:25] + xsteps[:1] + direct[25:] + xsteps[1:]
        plan = {'0': [4, (0, 11), (1, 11), 'A', (2, 9), 'E3', (3, 9)],
                '1': [4, (0, 11), (1, 11), (2, 9), 'E3', 'A', (3, 9)],
                '2': [4, (0, 11), (1, 11), (2, 5), 'E3', 'A', (3, 13)],
                '3': [4, (0, 11), (1, 11), (2, 12), 'E3', 'A', (3, 6)]}[OPT['plan']]
    else:
        direct = direct + xsteps
        plan = {'0': [16, (0, 4), (1, 4), 'A', (2, 5), (3, 5), (4, 4), 'E3', (5, 5)],
                '1': [16, (0, 4), (1, 4), (2, 5), (3, 5), (4, 4), 'E3', 'A', (5, 5)],
                '2': [16, (0, 4), (1, 4), (2, 5), (3, 5), 'E3', 'A', (4, 4), (5, 5)],
                '3': [16, (0, 4), (1, 4), (2, 5), (3, 5), (4, 5), 'E3', 'A', (5, 4)]}[OPT['plan']]
    b2 = sorted({t - d for t in tiles for d in (2, 3, 4) if t >= 2 and t - d >= 0})
    b3 = sorted({t - d for t in tiles for d in (4, 5, 6, 7) if t >= 4 and t - d >= 0})
    blocks = sorted(set(b2) | set(b3))
    D = lambda k: DT_ + 4 * k
    def cv(pf, k, dsrc):
        return lambda: g.v_cvt_pk_f16_f32(v(pf + k), v(D(dsrc) + 2 * (k & 1)), v(D(dsrc) + 2 * (k & 1) + 1))
    seq = []
    di = 0
    def take(n):
        nonlocal di
        out = [list(x) + [[]] for x in direct[di:di + n]]
        di += n
        return out
    aUP = TMP + 36
    head = take(plan[0])
    if not OPT['x0early']:
        head[1][3].append(lambda: g.global_load_dwordx4(v(XRAW, 4), v(aOUT), s(pXR0, 2), mod=OPT['xnt']))
    if not OPT['x1late'] and OPT['x0early'] != 2:
        head[3][3].append(lambda: g.global_load_dwordx4(v(XRAW + 4, 4), v(aOUT), s(pXR1, 2), mod=OPT['xnt']))
    wdq = []
    def wd_addr():
        g.v_lshrrev_b32(v(aUP), 5, v(vLANE))
        g.v_mul_u32_u24(v(aUP), 8 * WDRS, v(aUP))
        g.v_and_b32(v(aUP + 1), 31, v(vLANE))
        g.v_lshl_add_u32(v(aUP), v(aUP + 1), 4, v(aUP))
        g.s_and_b32(s(sT4), s(sC), 3)
        g.s_mul_i32(s(sT4), s(sT4), 16 * WDRS)
        g.s_add_u32(s(sT4), s(sT4), L_WST)
        g.v_add_u32(v(aUP), s(sT4), v(aUP))
    def wd_write(i):
        def f():
            lab = g.newlabel('wdw')
            g.s_and_b32(s(sT5), s(sMOE), s(sHI))
            g.s_cbranch_scc0(lab)
            with g.guarded('moe&hi'):
                g.ds_write_b128(v(aUP), v(WD + 4 * i, 4), mod=f'offset:{WDRS * i}')
            g.label(lab)
        return f
    wdq = [wd_addr] + [wd_write(i) for i in range(8)]
    vq = e3_addresses()
    st3 = list(head)
    marks = {}
    for item in plan[1:]:
        if item in ('A', 'E3'):
            marks[item] = len(st3) - 1
            continue
        b, ndir = item
        def wa(f, b=b):
            if b in b2:
                g.v_mfma_f32_16x16x32_f16(v(D(0), 4), f, v(B5, 4), 0)
                g.v_mfma_f32_16x16x32_f16(v(D(1), 4), f, v(B3, 4), 0)
            if b in b3:
                g.v_mfma_f32_16x16x32_f16(v(D(4), 4), f, v(B7, 4), 0)
        def wb(f, b=b):
            if b in b2:
                g.v_mfma_f32_16x16x32_f16(v(D(2), 4), f, v(B5, 4), 0)
                g.v_mfma_f32_16x16x32_f16(v(D(3), 4), f, v(B3, 4), 0)
            if b in b3:
                g.v_mfma_f32_16x16x32_f16(v(D(5), 4), f, v(B9, 4), 0)
        st3.append([aF, 64 * (8 * b + 8), wa, []])
        st3.append([aF2, 64 * (8 * b + 8), wb, []])
        grp = take(ndir)
        packs = []
        if b in b2:
            packs += [cv(PF[0], 0, 0), cv(PF[0], 1, 0), cv(PF[0], 2, 1), cv(PF[0], 3, 1),
                      cv(PF[1], 0, 2), cv(PF[1], 1, 2), cv(PF[1], 2, 3), cv(PF[1], 3, 3)]
        mains2 = [(t, PF[p_], KS2(t - b, p_)) for t in tiles if b in b2 and t >= 2 and (t - b) in (2, 3, 4)
                  for p_ in range(2)]
        mains3 = [(t, PF[0], KS3(t - b)) for t in tiles if b in b3 and t >= 4 and (t - b) in (4, 5, 6, 7)]
        packs3 = [cv(PF[0], 0, 4), cv(PF[0], 1, 4), cv(PF[0], 2, 5), cv(PF[0], 3, 5)] if b in b3 else []
        def part1(packs=packs):
            for p_ in packs:
                p_()
        def part2(mains2=mains2, packs3=packs3):
            for i_, (t, pf, kf) in enumerate(mains2):
                mm(t, v(pf, 4), v(kf, 4))
            for p_ in packs3:
                p_()
        def part3(mains3=mains3):
            for t, pf, kf in mains3:
                mm(t, v(pf, 4), v(kf, 4))
        n_ = len(grp)
        grp[min(1, n_ - 1)][3].append(part1)
        grp[min(2, n_ - 1)][3].append(part2)
        grp[min(3, n_ - 1)][3].append(part3)
        st3.extend(grp)
    assert di == len(direct) and {x[0] for x in plan[1:] if isinstance(x, tuple)} == set(blocks)
    for i, st in enumerate(st3):
        if wdq:
            st[3].append(wdq.pop(0))
        else:
            for _ in range(3):
                if vq:
                    st[3].append(vq.pop(0))
    assert not vq and marks['A'] >= 10
    def round_a():
        sfill(100)
        y_to_lds((0, 1), GU)
        g.waitcnt(lgkm=0)
        g.s_barrier()
        epi_round(0, 1)
        stamp('roundA')
    if OPT['plan'] != '0':
        def both():
            sfill(100)
            stamp('preA')
            if OPT['ts'] and OPT['only'] and 'xrawok' in OPT['only']:
                g.waitcnt(vm=1)
                stamp('xrawok')
            y_to_lds((0, 1), WD + 8)
            e3()
            epi_round(0, 1)
            stamp('roundA')
        st3[marks['A']][3].append(both)
        st3[marks['E3'] - int(OPT['halead'])][3].append(ha_poll_issue)
    else:
        st3[marks['A']][3].append(round_a)
    if OPT['plan'] != '0':
        pass
    elif OPT['e3blk'] == 'end':
        st3[len(st3) - int(OPT['halead'])][3].append(ha_poll_issue)
    else:
        st3[marks['E3']][3].append(e3)
        st3[marks['E3'] - int(OPT['halead'])][3].append(ha_poll_issue)
    seq += st3
    toks = []
    def issue(i):
        toks.append(q.op('ds_read_b128', v(FB_ + 4 * (i % NFB), 4), v(seq[i][0]), mod=f'offset:{seq[i][1]}'))
    for i in range(NFB - 1):
        issue(i)
    for i in range(len(seq)):
        q.need(toks[min(i + 1, len(toks) - 1)] if (OPT['w2'] and i % 2 == 0) else toks[i])
        seq[i][2](v(FB_ + 4 * (i % NFB), 4))
        if i + NFB - 1 < len(seq):
            issue(i + NFB - 1)
        for f in seq[i][3]:
            f()
        sfill(1)
    sfill(100)


lab, lab2 = g.newlabel('cset1'), g.newlabel('cdone')
g.s_cmp_lg_u32(s(sSET), 0)
g.s_cbranch_scc1(lab)
with g.guarded('set0'):
    conv((0, 1, 6, 7))
    g.s_branch(lab2)
g.label(lab)
with g.guarded('!set0'):
    conv((2, 3, 4, 5))
g.label(lab2)
y_to_lds((2, 3), GU)
g.s_lshl_b32(s(sT0), s(sDEL), 1)
g.v_add_u32(v(aEX0), s(sT0), v(aEX0))
g.v_add_u32(v(aEX1), s(sT0), v(aEX1))
HBV = TMP + 16
g.v_lshlrev_b32(v(HBV + 14), 3, v(vLANE))
stamp('conv')
if OPT['e3blk'] == 'end':
    e3()
else:
    g.waitcnt(lgkm=0)
    g.s_barrier()
stamp('ybar')


def hb_loads():
    for k in range(7):
        g.global_load_dwordx2(v(HBV + 2 * k, 2), v(HBV + 14), s(pHBR, 2), mod=f'offset:{512 * k} sc1')


wait_moe(2 if OPT['x1late'] else 1, 1)
lab = g.newlabel('hbp')
g.s_cmp_ge_u32(s(sOWN), 64)
g.s_cbranch_scc1(lab)
with g.guarded('own'):
    hb_loads()
g.label(lab)
epi_round(1, 63)
stamp('epilogue')

for tau, (si, sk) in enumerate(((sI0, sK0), (sI1, sK1))):
    skip = g.newlabel('norouted')
    g.s_cmp_ge_u32(s((sOW0, sOW1)[tau]), 64)
    g.s_cbranch_scc1(skip)
    with g.guarded('own'):
        H = GU
        chk, again, done = g.newlabel('chk'), g.newlabel('again'), g.newlabel('pdone')
        g.s_mov_b32(s(sCNT), 0)
        g.v_and_b32(v(H + 21), 7, v(vLANE))
        g.v_lshrrev_b32(v(H + 22), 1, v(H + 21))
        g.s_lshr_b32(s(sT2), s(si), 3)
        g.s_add_u32(s(sT3), s(sT2), PADB // 16)
        g.v_xor_b32(v(H + 22), s(sT3), v(H + 22))
        g.v_lshlrev_b32(v(H + 22), 4, v(H + 22))
        g.v_mul_u32_u24(v(H + 23), CS, v(H + 21))
        g.v_add_u32(v(H + 22), v(H + 22), v(H + 23))
        g.s_and_b32(s(sT2), s(si), 7)
        g.s_lshl_b32(s(sT2), s(sT2), 1)
        g.v_add_u32(v(H + 22), s(sT2), v(H + 22))
        g.v_lshlrev_b32(v(H + 24), 1, v(H + 21))
        g.ds_read_u16(v(H + 16), v(H + 22), mod=f'offset:{L_XN}')
        g.ds_read_u16(v(H + 17), v(H + 24), mod=f'offset:{L_SROW + 32 * tau + 16}')
        g.ds_read_u16(v(H + 18), v(H + 24), mod=f'offset:{L_SROW + 32 * tau}')
        g.s_lshr_b32(s(sT2), s(sk), 16)
        g.s_and_b32(s(sT3), s(sT2), '0x8000')
        g.s_cmp_lg_u32(s(sT3), 0)
        g.s_mov_b32(s(sT4), '0x8000')
        g.s_cselect_b32(s(sT3), s(sT4), '0xffff')
        g.s_xor_b32(s(sT2), s(sT2), s(sT3))
        g.s_lshl_b32(s(sT2), s(sT2), 16)
        g.v_mov_b32(v(H + 19), s(sT2))
        g.v_mul_f32(v(H + 19), hx(f2u(-LOG2E)), v(H + 19))
        g.v_exp_f32(v(H + 19), v(H + 19))
        g.s_lshl_b32(s(sT2), s(si), 11)
        g.s_lshl_b32(s(sT3), s(sCG), 4)
        g.v_add_f32(v(H + 19), 1.0, v(H + 19))
        g.s_add_u32(s(sT2), s(sT2), s(sT3))
        g.v_rcp_f32(v(H + 19), v(H + 19))
        g.s_load_dwordx2(s(pB, 2), s(0, 2), 96)
        round_bf16(H + 19, H + 19)
        if tau == 1:
            g.s_cmp_ge_u32(s(sOW0), 64)
            g.s_cbranch_scc1(chk)
            addr(pHBR, pHBR, 128 * 56 * 64)
            g.s_branch(again)
        else:
            g.s_branch(chk)
        g.label(again)
        hb_loads()
        g.label(chk)
        g.waitcnt(vm=0, lgkm=0)
        g.v_xor_b32(v(H + 25), s(sTAG), v(HBV + 1))
        for k in range(1, 7):
            g.v_xor_b32(v(H + 26), s(sTAG), v(HBV + 2 * k + 1))
            g.v_or_b32(v(H + 25), v(H + 25), v(H + 26))
        g.v_cmp_eq_u32('vcc', 0, v(H + 25))
        g.v_add_f32(v(H), v(HBV), v(HBV + 2))
        g.v_add_f32(v(H + 1), v(HBV + 4), v(HBV + 6))
        g.s_cmp_eq_u64('vcc', 'exec')
        g.s_cbranch_scc1(done)
        if 'nohb' not in ABL:
            poll_fail(again, 3)
        g.label(done)
        g.v_add_f32(v(H + 2), v(HBV + 8), v(HBV + 10))
        g.v_add_f32(v(H), v(H), v(HBV + 12))
        g.v_add_f32(v(H + 1), v(H + 1), v(H + 2))
        g.v_add_f32(v(H), v(H), v(H + 1))
        addr(pB, pB, s(sT2))
        g.v_cvt_f32_f16(v(H + 16), v(H + 16))
        g.v_add_f32_dpp(v(H), v(H), v(H), mod=f'row_ror:8 {DPP}')
        g.v_lshlrev_b32(v(H + 17), 16, v(H + 17))
        g.v_mov_b32(v(H + 1), v(H))
        g.v_lshlrev_b32(v(H + 18), 16, v(H + 18))
        g.v_permlane16_swap_b32(v(H), v(H + 1))
        g.v_add_f32(v(H), v(H), v(H + 1))
        g.v_mov_b32(v(H + 1), v(H))
        g.v_permlane32_swap_b32(v(H), v(H + 1))
        g.v_add_f32(v(H), v(H), v(H + 1))
        round_bf16(H, H)
        g.v_mul_f32(v(H), v(H), v(H + 19))
        round_bf16(H, H)
        g.v_add_f32(v(H), v(H), v(H + 16))
        round_bf16(H, H)
        g.v_mul_f32(v(H + 1), hx(f2u(-LOG2E)), v(H))
        g.v_exp_f32(v(H + 1), v(H + 1))
        g.v_add_f32(v(H + 1), 1.0, v(H + 1))
        g.v_rcp_f32(v(H + 1), v(H + 1))
        g.v_mul_f32(v(H), v(H), v(H + 1))
        round_bf16(H, H)
        g.v_mul_f32(v(H), v(H + 18), v(H))
        round_bf16(H, H)
        g.v_add_f32(v(H), v(H + 17), v(H))
        g.v_cvt_pk_bf16_f32(v(H), v(H), v(H))
        set_exec('0xff', 0)
        g.global_store_short(v(H + 24), v(H), s(pB, 2))
        g.s_mov_b64('exec', -1)
    g.label(skip)
lab = g.newlabel('ep')
g.s_cmp_lg_u32(s(sW), 0)
g.s_cbranch_scc1(lab)
g.s_cmp_lg_u32(s(sC), 0)
g.s_cbranch_scc1(lab)
with g.guarded('w0'):
    g.s_add_u32(s(sT0), s(sEP), 1)
    g.v_mov_b32(v(TMP + 1), s(sT0))
    g.v_mov_b32(v(TMP), 0)
    set_exec(1, 0)
    g.global_store_dword(v(TMP), v(TMP + 1), s(pWS, 2))
    g.s_mov_b64('exec', -1)
g.label(lab)
stamp('end')
if OPT['ts']:
    g.v_writelane_b32(v(vTID), s(94), 39)
    g.s_memtime(s(sTS, 2))
    g.s_waitcnt('lgkmcnt(0)')
    g.v_writelane_b32(v(vTID), s(sTS), 31)
    g.s_memrealtime(s(sTS, 2))
    g.s_waitcnt('lgkmcnt(0)')
    g.v_writelane_b32(v(vTID), s(sTS), 33)
    g.s_lshl_b32(s(sT0), s(sW), 3)
    g.s_add_u32(s(sT0), s(sT0), s(sC))
    g.s_lshl_b32(s(sT0), s(sT0), 8)
    g.s_add_u32(s(sT0), s(sT0), WS_TS)
    addr(pA, pWS, s(sT0))
    g.v_lshlrev_b32(v(TMP), 2, v(vLANE))
    g.global_store_dword(v(TMP), v(vTID), s(pA, 2))
g.label('L_end')
g.s_endpgm()


def table():
    rows = []
    def frag(fn):
        out = []
        for l in range(64):
            n, kq = l & 15, l >> 4
            for k in range(4):
                w = 0
                for h in range(2):
                    w |= fn(n, kq, 2 * k + h) << (16 * h)
                out.append(w)
        return out
    for lo, hi in ((-10, -6), (-5, -3), (-11, -5), (-12, -4)):
        rows += frag(lambda n, kq, i: 0x3c00 if lo <= 8 - 8 * kq + i - n <= hi else 0)
    rows += frag(lambda n, kq, i: 0xffff if 14 <= 8 * kq + n - i <= 20 else 0)
    def lane_vals(l):
        j, h, n, kq = l & 31, l >> 5, l & 15, l >> 4
        gam = (n + 1) & 3
        return [2 * 540 - 16 * j - 8 * h,
                2 * 280 - 16 * j,
                2 * (E_T3E + 47 - 64 - 16 + 128 * (j & 1) - (j >> 1)),
                2 * (E_T7 + 63 - 48 + 80 * (j & 1) - (j >> 1)),
                8 * l,
                KCP * gam + 2 * (gam - n - 8 * kq + 551 - 512),
                KCP * gam + 2 * (gam - n + 4 * kq),
                ((l >> 3) << 15) + ((l & 7) << 4)]
    for half in range(2):
        for l in range(64):
            rows += [x & 0xffffffff for x in lane_vals(l)[4 * half:4 * half + 4]]
    return rows


npad = g.insert_pads()
for p in g.check_branch_edges():
    print('EDGE', p, file=sys.stderr)
base = dict(always=True, w0=False, w01=False, own=True, rare=True, moe=False, hi=False, set0=False)
for name, sc in (('low moe set0', dict(moe=True, w0=True, w1=True, w01=True, set0=True)),
                 ('high moe set1', dict(moe=True, hi=True)),
                 ('low nomoe', dict(w0=True, w1=True, w01=True, set0=True)),
                 ('high nomoe', dict(hi=True)),
                 ('low plain', dict(moe=True, set0=True))):
    d = dict(base)
    d.update(sc)
    for p in g.check_waits(d):
        print('WAIT', name, p, file=sys.stderr)
nv, ns, na = g.max_regs()
print(f'; pads {npad}, vgprs {nv}, sgprs {ns}, instructions {sum(1 for i in g.items if isinstance(i, Inst))}',
      file=sys.stderr)
if OPT['ts']:
    print('STAMPS', ','.join(STAMP_NAMES), file=sys.stderr)
    open('stamps.txt', 'w').write(','.join(STAMP_NAMES))
hdr = open('/code/' + NAME + '.s.ref').read().split('\n')
head = [l for l in hdr if l.startswith(';') and '@launch' not in l and 'Override launch' not in l]
head = head[:head.index(next(l for l in head if 'd_ws' in l)) + 1]
out = '\n'.join(head) + f'\n; @launch grid=(256,1,1) block=(512,1,1) lds={LDS_BYTES}\n'
out += f'''.amdgcn_target "amdgcn-amd-amdhsa--gfx950"
.text
.globl {NAME}_kernel
.p2align 8
.type {NAME}_kernel,@function
{NAME}_kernel:
'''
out += g.text()
tb = table()
out += '.p2align 8\n.type L_tab,@object\nL_tab:\n'
for i in range(0, len(tb), 8):
    out += '    .long ' + ', '.join(f'0x{x:08x}' for x in tb[i:i + 8]) + '\n'
out += 'L_tabend:\n.size L_tab, .-L_tab\n'
out += f'''.section .rodata,"a"
.p2align 6
.amdhsa_kernel {NAME}_kernel
  .amdhsa_next_free_vgpr 256
  .amdhsa_next_free_sgpr 100
  .amdhsa_accum_offset 256
  .amdhsa_group_segment_fixed_size 0
  .amdhsa_kernarg_size 120
  .amdhsa_user_sgpr_count 2
  .amdhsa_user_sgpr_kernarg_segment_ptr 1
  .amdhsa_system_sgpr_workgroup_id_x 1
  .amdhsa_float_denorm_mode_32 3
.end_amdhsa_kernel
'''
open(sys.argv[1], 'w').write(out)
```

```python
import sys
src, dst, mode = sys.argv[1], sys.argv[2], sys.argv[3]
t = open(src).read()
mod = {'nt': 'nt', 'def': '', 'none': None, 'sc1nt': 'sc1 nt', 'xnt': 'nt', 'xdef': '', 'sc01nt':'sc0 sc1 nt', 'sc1':'sc1'}[mode]
body = ''
if mode.startswith('x'):
    body += """
    s_load_dwordx2 s[4:5], s[0:1], 0
    v_lshlrev_b32 v1, 4, v0
    s_lshl_b32 s11, s2, 14
    v_add_u32 v1, s11, v1
    v_add_u32 v2, 0x2000, v1
    s_waitcnt lgkmcnt(0)
    global_load_dwordx4 v[4:7], v1, s[4:5] %s
    global_load_dwordx4 v[8:11], v2, s[4:5] %s
    s_waitcnt vmcnt(0)
""" % (mod, mod)
elif mod is not None:
    body += """
    s_load_dwordx4 s[4:7], s[0:1], 72
    s_load_dwordx2 s[8:9], s[0:1], 88
    v_lshrrev_b32 v1, 6, v0
    s_nop 1
    v_readfirstlane_b32 s10, v1
    v_and_b32 v1, 63, v0
    v_lshlrev_b32 v1, 4, v1
    s_mul_i32 s11, s2, 28672
    s_lshl_b32 s12, s10, 12
    s_add_u32 s11, s11, s12
    v_add_u32 v1, s11, v1
    s_waitcnt lgkmcnt(0)
    s_cmp_ge_u32 s10, 7
    s_cbranch_scc1 L_probe_done
"""
    r = 4
    for p in (4, 6, 8):
        for k in range(4):
            body += f"    global_load_dwordx4 v[{r}:{r+3}], v1, s[{p}:{p+1}] offset:{1024*k} {mod}\n"
            r += 4
    body += "    s_waitcnt vmcnt(0)\nL_probe_done:\n"
else:
    body += """
    s_load_dwordx4 s[4:7], s[0:1], 72
    s_waitcnt lgkmcnt(0)
"""
body += """
    s_memrealtime s[90:91]
    s_waitcnt lgkmcnt(0)
    s_sub_u32 s90, s90, s94
    s_mul_i32 s95, s90, 10
    s_add_u32 s95, s95, 4000
"""
t = t.replace("    s_setprio 3\n", "    s_memrealtime s[94:95]\n" + body + "    s_setprio 3\n", 1)
t = t.replace("L_end:\n", f"""L_padx:
    s_sleep 1
    s_memrealtime s[90:91]
    s_waitcnt lgkmcnt(0)
    s_sub_u32 s90, s90, s94
    s_cmp_lt_u32 s90, s95
    s_cbranch_scc1 L_padx
L_end:
""", 1)
open(dst, 'w').write(t)
```

```python
import sys
src, dst, r = sys.argv[1], sys.argv[2], sys.argv[3]
t = open(src).read()
body = """
    s_load_dwordx2 s[4:5], s[0:1], 104
    s_waitcnt lgkmcnt(0)
    s_not_b32 s6, s94
    v_mov_b32 v2, s6
    v_mov_b32 v1, 0
    v_cmp_eq_u32 vcc, 0, v0
    s_and_saveexec_b64 s[6:7], vcc
    s_cbranch_execz L_noat
    global_atomic_umax v1, v2, s[4:5] offset:128 sc1
L_noat:
    s_mov_b64 exec, -1
"""
t = t.replace("    s_setprio 3\n", "    s_memrealtime s[94:95]\n" + body + "    s_setprio 3\n", 1)
sel = "" if r == 'all' else f"""
    s_and_b32 s91, s2, 7
    s_cmp_eq_u32 s91, {r}
    s_cselect_b32 s95, s95, 0
"""
t = t.replace("L_end:\n", f"""
    s_load_dwordx2 s[4:5], s[0:1], 104
    s_waitcnt lgkmcnt(0)
    v_mov_b32 v1, 0
    global_load_dword v2, v1, s[4:5] offset:128 sc1
    s_waitcnt vmcnt(0)
    v_readfirstlane_b32 s90, v2
    s_nop 3
    s_not_b32 s90, s90
    s_sub_u32 s95, s94, s90
    s_max_i32 s95, s95, 0
    s_min_u32 s95, s95, 2000
    s_mov_b32 s94, s90
{sel}
    s_mul_i32 s95, s95, 10
    s_add_u32 s95, s95, 4000
L_padx:
    s_sleep 1
    s_memrealtime s[90:91]
    s_waitcnt lgkmcnt(0)
    s_sub_u32 s90, s90, s94
    s_cmp_lt_u32 s90, s95
    s_cbranch_scc1 L_padx
L_end:
""", 1)
open(dst, 'w').write(t)
```

```python
import sys, subprocess, re, ast
gen, dst, mode = sys.argv[1:4]
only = mode[3:] if mode.startswith('at:') else 'none'
subprocess.check_call([sys.executable, gen, dst, 'ts=1', 'only=' + only] + sys.argv[4:], stderr=subprocess.DEVNULL)
t = open(dst).read()
i = t.index('L_fin:\n'); j = t.index('L_end:\n')
first = """
    s_load_dwordx2 s[4:5], s[0:1], 104
    s_waitcnt lgkmcnt(0)
    s_not_b32 s6, s80
    v_mov_b32 v2, s6
    v_mov_b32 v1, 0
    s_mov_b64 exec, 1
    s_cmp_lg_u32 s3, 0
    s_cbranch_scc1 L_w1
    global_atomic_umax v1, v2, s[4:5] offset:128 sc1
    s_waitcnt vmcnt(0)
L_w1:
    s_sleep 8
    s_memrealtime s[96:97]
    s_waitcnt lgkmcnt(0)
    s_sub_u32 s96, s96, s80
    s_cmp_lt_u32 s96, 3000
    s_cbranch_scc1 L_w1
    global_load_dword v2, v1, s[4:5] offset:128 sc1
    s_waitcnt vmcnt(0)
    v_readfirstlane_b32 s7, v2
    s_nop 3
    s_not_b32 s7, s7
"""
if mode == 'retry':
    code = """    s_mov_b32 s98, 0
    s_cmp_ge_u32 s3, 8
    s_cbranch_scc1 L_d1
    s_cmp_ge_u32 s3, 4
    s_cbranch_scc1 L_d2
    s_sub_u32 s78, s78, 1
    s_sub_u32 s79, s79, 1
    s_min_u32 s79, s79, 2
    s_mul_i32 s98, s78, 1000
    s_mul_i32 s79, s79, 300
    s_add_u32 s98, s98, s79
    s_branch L_d1
L_d2:
    s_cmp_ge_u32 s2, 224
    s_cbranch_scc1 L_d1
    s_sub_u32 s79, s79, 1
    s_min_u32 s79, s79, 2
    s_mul_i32 s98, s79, 100
L_d1:
"""
elif mode == 'stag':
    code = first + """    s_sub_u32 s98, s80, s7
    s_cmp_eq_u32 s3, 0
    s_cselect_b32 s98, s98, 0
    s_mul_i32 s98, s98, 20
    s_mov_b32 s80, s7
"""
else:
    code = first + """    s_sub_u32 s98, s82, s7
    s_cmp_eq_u32 s82, 0
    s_cselect_b32 s98, 0, s98
    s_mul_i32 s98, s98, 10
    s_mov_b32 s80, s7
"""
t = t[:i] + "L_fin:\n    s_waitcnt vmcnt(0) lgkmcnt(0)\n" + code + """    s_min_u32 s98, s98, 20000
    s_add_u32 s98, s98, 4000
L_padx:
    s_sleep 8
    s_memrealtime s[96:97]
    s_waitcnt lgkmcnt(0)
    s_sub_u32 s96, s96, s80
    s_cmp_lt_u32 s96, s98
    s_cbranch_scc1 L_padx
""" + t[j:]
t = re.sub(r'; STAMPS.*\n', '', t)
open(dst, 'w').write(t)
```

```python
import sys
src, dst, mode = sys.argv[1], sys.argv[2], sys.argv[3]
t = open(src).read()

def xbody(mode):
    slot, off, op = {'wsld': (112, 0x200000, 'ld'), 'wsld2': (112, 0xF000000, 'ld'), 'outld': (96, 0, 'ld'), 'wsst': (112, 0x1000000, 'st'), 'wsst2': (112, 0xF000000, 'st'), 'bxld': (56, 0, 'ld')}[mode]
    acc = ("    global_load_dwordx4 v[4:7], v1, s[4:5]\n    global_load_dwordx4 v[8:11], v2, s[4:5]\n" if op == 'ld' else
           "    global_store_dwordx4 v1, v[4:7], s[4:5] sc1\n    global_store_dwordx4 v2, v[4:7], s[4:5] sc1\n")
    return f"""
    s_load_dwordx2 s[4:5], s[0:1], {slot}
    v_lshlrev_b32 v1, 4, v0
    s_lshl_b32 s11, s2, 14
    s_add_u32 s11, s11, {off}
    v_add_u32 v1, s11, v1
    v_add_u32 v2, 0x2000, v1
    s_waitcnt lgkmcnt(0)
{acc}    s_waitcnt vmcnt(0)
"""
XM = ('wsld', 'wsld2', 'outld', 'wsst', 'wsst2', 'bxld')
mod = {'nt': 'nt', 'def': '', 'none': None, 'sc1nt': 'sc1 nt', 'xnt': 'nt', 'xdef': '', 'sc01nt':'sc0 sc1 nt', 'sc1':'sc1'}.get(mode)
body = ''
if mode in XM:
    body += xbody(mode)
elif mode.startswith('x'):
    body += """
    s_load_dwordx2 s[4:5], s[0:1], 0
    v_lshlrev_b32 v1, 4, v0
    s_lshl_b32 s11, s2, 14
    v_add_u32 v1, s11, v1
    v_add_u32 v2, 0x2000, v1
    s_waitcnt lgkmcnt(0)
    global_load_dwordx4 v[4:7], v1, s[4:5] %s
    global_load_dwordx4 v[8:11], v2, s[4:5] %s
    s_waitcnt vmcnt(0)
""" % (mod, mod)
elif mod is not None:
    body += """
    s_load_dwordx4 s[4:7], s[0:1], 72
    s_load_dwordx2 s[8:9], s[0:1], 88
    v_lshrrev_b32 v1, 6, v0
    s_nop 1
    v_readfirstlane_b32 s10, v1
    v_and_b32 v1, 63, v0
    v_lshlrev_b32 v1, 4, v1
    s_mul_i32 s11, s2, 28672
    s_lshl_b32 s12, s10, 12
    s_add_u32 s11, s11, s12
    v_add_u32 v1, s11, v1
    s_waitcnt lgkmcnt(0)
    s_cmp_ge_u32 s10, 7
    s_cbranch_scc1 L_probe_done
"""
    r = 4
    for p in (4, 6, 8):
        for k in range(4):
            body += f"    global_load_dwordx4 v[{r}:{r+3}], v1, s[{p}:{p+1}] offset:{1024*k} {mod}\n"
            r += 4
    body += "    s_waitcnt vmcnt(0)\nL_probe_done:\n"
else:
    body += """
    s_load_dwordx4 s[4:7], s[0:1], 72
    s_waitcnt lgkmcnt(0)
"""
body += """
    s_memrealtime s[90:91]
    s_waitcnt lgkmcnt(0)
    s_sub_u32 s90, s90, s94
    s_mul_i32 s95, s90, 10
    s_add_u32 s95, s95, 4000
"""
t = t.replace("    s_setprio 3\n", "    s_memrealtime s[94:95]\n" + body + "    s_setprio 3\n", 1)
t = t.replace("L_end:\n", f"""L_padx:
    s_sleep 1
    s_memrealtime s[90:91]
    s_waitcnt lgkmcnt(0)
    s_sub_u32 s90, s90, s94
    s_cmp_lt_u32 s90, s95
    s_cbranch_scc1 L_padx
L_end:
""", 1)
open(dst, 'w').write(t)
```
